```python
import torch

def _softmax(x, axis=-1):
    return torch.softmax(x, dim=axis)
def _gelu(x):
    return torch.nn.functional.gelu(x, approximate="tanh")
def _silu(x):
    return torch.nn.functional.silu(x)
def _sigmoid(x):
    return torch.sigmoid(x)
def _layernorm(x, axis=-1, eps=1e-5):
    m = x.mean(dim=axis, keepdim=True)
    v = x.var(dim=axis, keepdim=True, unbiased=False)
    return (x - m) / torch.sqrt(v + eps)
def _scatter_add(tgt, idx, src, axis=0):
    return tgt.clone().index_add_(axis, idx, src)
def _segment_sum(src, seg, n):
    out = torch.zeros((n,) + src.shape[1:], dtype=src.dtype)
    return out.index_add_(0, seg, src)
def _pad(x, pw):
    flat = tuple(v for pair in reversed(pw) for v in pair)
    return torch.nn.functional.pad(x, flat)

kernel_name = 'recurrent_scan__sliding_local_dilated__swiglu_ffn__prompt'

def setup_inputs():

    _w = (lambda a: (lambda t: t.to(torch.bfloat16) if t.is_floating_point() else t)(torch.as_tensor(a)))
    def _A_setup():
        B, S, D = 1, 2048, 640
        return {
            "x": _w((lambda *s: torch.randn(*s, dtype=torch.bfloat16) * 0.05)(B, S, D)),
            "wqkv": _w((lambda *s: torch.randn(*s, dtype=torch.bfloat16) * 0.05)(D, 3 * D)),
            "wo": _w((lambda *s: torch.randn(*s, dtype=torch.bfloat16) * 0.05)(D, D)),
        }
    _A_in = _A_setup()

    def _B_setup():
        B, S, D, F = 1, 2048, 640, 1728
        return {
            "x": _w((lambda *s: torch.randn(*s, dtype=torch.bfloat16) * 0.05)(B, S, D)),
            "w_gate": _w((lambda *s: torch.randn(*s, dtype=torch.bfloat16) * 0.05)(D, F)),
            "w_up": _w((lambda *s: torch.randn(*s, dtype=torch.bfloat16) * 0.05)(D, F)),
            "w_down": _w((lambda *s: torch.randn(*s, dtype=torch.bfloat16) * 0.05)(F, D)),
        }
    _B_in = _B_setup()

    return {
        "A_x": _A_in["x"],
        "A_wqkv": _A_in["wqkv"],
        "A_wo": _A_in["wo"],
        "B_x": _B_in["x"],
        "B_w_gate": _B_in["w_gate"],
        "B_w_up": _B_in["w_up"],
        "B_w_down": _B_in["w_down"],
    }

def reference(A_x, A_wqkv, A_wo, B_x, B_w_gate, B_w_up, B_w_down):
    def _A_ref(x, wqkv, wo):
        B, S, D = x.shape
        H = 32; Dh = D // H
        W, dil = 8, 2
        qkv = (lambda x, *d: x.permute(*d))((x @ wqkv).reshape(B, S, 3, H, Dh), 2, 0, 3, 1, 4)
        q, k, v = qkv[0], qkv[1], qkv[2]
        scale = Dh ** -0.5
        pos = torch.arange(S)
        off = torch.arange(W) * dil
        idx = pos[:, None] - off[None, :]
        mask = idx >= 0
        idx_c = torch.where(mask, idx, 0).reshape(-1)
        kg = k[:, :, idx_c, :].reshape(B, H, S, W, Dh)
        vg = v[:, :, idx_c, :].reshape(B, H, S, W, Dh)
        logits = torch.einsum("bhsd,bhswd->bhsw", q, kg) * scale
        logits = torch.where(mask[None, None, :, :], logits, -1e9)
        attn = _softmax(logits, axis=-1)
        o = torch.einsum("bhsw,bhswd->bhsd", attn, vg)
        return (lambda x, *d: x.permute(*d))(o, 0, 2, 1, 3).reshape(B, S, D) @ wo

    def _B_ref(x, w_gate, w_up, w_down):
        g = _silu(x @ w_gate)
        u = x @ w_up
        return (g * u) @ w_down

    x = A_x
    xn = _layernorm(x, axis=-1)
    s = _A_ref(xn, A_wqkv, A_wo)
    g = _silu(_B_ref(xn, B_w_gate, B_w_up, B_w_down))
    return x + s * g
```

```python
import sys, struct, os

NAME = "recurrent_scan__sliding_local_dilated__swiglu_ffn__prompt"
OPT = dict(stamps=False, rot=True)

S, D, F = 2048, 640, 1728
NKG = 148
ACT_BYTES = 64 * NKG * 1024
STATS_OFF = 0xA00000
COLS_OFF = 0xA10000
STAMP_OFF = 0xA20000
WS_BYTES = 0xA40000
U = 171
LOG2E = 1.4426950408889634


def f2u(x):
    return struct.unpack("<I", struct.pack("<f", x))[0]


class Asm:
    def __init__(self):
        self.l = []
        self.nlab = 0

    def __call__(self, s):
        self.l.append("    " + s)

    def label(self, s):
        self.l.append(s + ":")

    def newlabel(self, p="L"):
        self.nlab += 1
        return "%s_%d" % (p, self.nlab)

    def c(self, s):
        self.l.append("    ; " + s)

    def text(self):
        return "\n".join(self.l) + "\n"


def v(i, n=1):
    return "v%d" % i if n == 1 else "v[%d:%d]" % (i, i + n - 1)


def s(i, n=1):
    return "s%d" % i if n == 1 else "s[%d:%d]" % (i, i + n - 1)


def srd(a, d, base, nbytes):
    a("s_mov_b32 %s, %s" % (s(d), s(base)))
    a("s_and_b32 %s, %s, 0xffff" % (s(d + 1), s(base + 1)))
    a("s_mov_b32 %s, 0x%x" % (s(d + 2), nbytes))
    a("s_mov_b32 %s, 0x20000" % s(d + 3))


class LgkmTracker:
    def __init__(self):
        self.ev = []

    def rd(self, tag, text):
        self.ev.append(("rd", tag, text))

    def need(self, *tags):
        self.ev.append(("need", tags))

    def txt(self, text):
        self.ev.append(("txt", text))

    def drain(self):
        self.ev.append(("drain",))

    def emit(self, a):
        n = len(self.ev)
        last_n = None
        for i, e in enumerate(self.ev):
            if e[0] == "rd":
                a(e[2])
            elif e[0] == "txt":
                a(e[1])
            elif e[0] == "drain":
                a("s_waitcnt lgkmcnt(0)")
            else:
                best = None
                for tag in e[1]:
                    cnt = 0
                    j = i
                    found = None
                    for _ in range(n):
                        j = (j - 1) % n
                        x = self.ev[j]
                        if x[0] == "drain":
                            found = "drained"
                            break
                        if x[0] == "rd":
                            if x[1] == tag:
                                found = cnt
                                break
                            cnt += 1
                    assert found is not None, tag
                    if found != "drained":
                        best = found if best is None else min(best, found)
                if best is not None:
                    a("s_waitcnt lgkmcnt(%d)" % min(best, 15))


SX, SG, SU, SWS, SDBG, SQ = 16, 20, 24, 28, 32, 36
sW, sRB, sCB, sLW = 40, 41, 42, 43
sT0, sT1, sT2, sT3 = 44, 45, 46, 47
sKA, sKB, sMA, sMB = 48, 49, 50, 51
sCNT, sDA, sDB, sAS = 52, 53, 54, 55
sROW0 = 56
sST = 60


def stamp(a, idx):
    if OPT["stamps"]:
        a("s_memrealtime %s" % s(sST + 2 * idx, 2))


def stamp_flush(a, n, kern, ws_srd, vt=0):
    if not OPT["stamps"]:
        return
    a("s_waitcnt lgkmcnt(0)")
    a("s_lshl_b32 %s, s2, 3" % s(sT0))
    a("s_add_u32 %s, %s, %s" % (s(sT0), s(sT0), s(sW)))
    a("s_lshl_b32 %s, %s, 5" % (s(sT0), s(sT0)))
    a("s_add_u32 %s, %s, 0x%x" % (s(sT0), s(sT0), STAMP_OFF + kern * 0x10000))
    a("v_mov_b32 %s, 0" % v(vt))
    for i in range(n):
        a("v_mov_b32 %s, %s" % (v(vt + 1), s(sST + 2 * i)))
        a("buffer_store_dword %s, %s, %s, %s offen offset:%d" % (v(vt + 1), v(vt), s(ws_srd, 4), s(sT0), 4 * i))
        a("s_nop 1")


def wrap_add(a, reg, inc, lim):
    a("s_add_u32 %s, %s, 0x%x" % (s(reg), s(reg), inc))
    a("s_cmp_ge_u32 %s, 0x%x" % (s(reg), lim))
    a("s_cselect_b32 %s, 0, %s" % (s(reg), s(reg)))


def dma(a, m0base, m0imm, voff, srdreg, soff, imm=0):
    a("s_add_u32 m0, %s, 0x%x" % (s(m0base), m0imm - imm))
    a("s_nop 0")
    o = " offset:%d" % imm if imm else ""
    a("buffer_load_dwordx4 %s, %s, %s offen%s lds" % (v(voff), s(srdreg, 4), s(soff), o))


def poll_flags(a, vF, vO, first_issue):
    a("buffer_load_dword %s, %s, %s, 0 offen sc1" % (v(vF), v(vO), s(SDBG, 4)))


def check_flags(a, vF, vO):
    ok = a.newlabel("L_fok")
    lp = a.newlabel("L_fsp")
    a.label(lp)
    a("v_cmp_ne_u32 vcc, 1, %s" % v(vF))
    a("s_nop 1")
    a("s_cmp_eq_u64 vcc, 0")
    a("s_cbranch_scc1 %s" % ok)
    a("s_sleep 2")
    a("buffer_load_dword %s, %s, %s, 0 offen sc1" % (v(vF), v(vO), s(SDBG, 4)))
    a("s_waitcnt vmcnt(0)")
    a("s_branch %s" % lp)
    a.label(ok)


FA_SLOT, FB_BASE, FB_SLOT, F_STAT = 16384, 49152, 24576, 147456
QA_SLOT, QB_BASE, QB_SLOT, Q_STAT = 24576, 73728, 16384, 150528


def loader_main(a, nA, nB, issueA, issueB, stats_issue, stats_write, vF, vO):
    per = nA + nB
    issueA(0, 0); issueA(0, 1)
    issueB(0); issueB(1)
    issueA(1, 0); issueA(1, 1)
    issueB(2)
    for h in range(20):
        if h <= 16:
            n = 2 * per
        elif h == 17:
            n = per + nB
        elif h == 18:
            n = nB
        else:
            n = 0
        a("s_waitcnt vmcnt(%d)" % n)
        a("s_barrier")
        if h == 0:
            stamp(a, 1)
        if h == 18:
            stats_write()
        if h + 3 <= 19:
            issueB(h + 3)
        if (h >> 1) + 2 <= 9:
            issueA((h >> 1) + 2, h & 1)
        if h == 12:
            poll_flags(a, vF, vO, True)
        if h == 15:
            stamp(a, 2)
            check_flags(a, vF, vO)
            stamp(a, 3)
            stats_issue()
    a("s_waitcnt lgkmcnt(0)")
    a("s_barrier")


def ffn_loader(a):
    a.c("---------------- FFN loader wave")
    vL, vOB, vOA0, vOA1, vT, vT2, vF, vO = 1, 2, 3, 4, 5, 6, 7, 8
    vS0, vS1, vS2, vSO, vSL = 12, 16, 20, 9, 10
    a("v_lshrrev_b32 %s, 3, %s" % (v(vT), v(vL)))
    a("s_lshl_b32 %s, %s, 3" % (s(sT0), s(sLW)))
    a("v_add_u32 %s, %s, %s" % (v(vOB), s(sT0), v(vT)))
    a("s_movk_i32 %s, 3456" % s(sT1))
    a("v_mul_lo_u32 %s, %s, %s" % (v(vOB), v(vOB), s(sT1)))
    a("v_bfe_u32 %s, %s, 4, 1" % (v(vT2), v(vL)))
    a("v_lshlrev_b32 %s, 2, %s" % (v(vT2), v(vT2)))
    a("v_and_b32 %s, 7, %s" % (v(vF), v(vL)))
    a("v_xor_b32 %s, %s, %s" % (v(vT2), v(vT2), v(vF)))
    a("v_lshl_add_u32 %s, %s, 4, %s" % (v(vOB), v(vT2), v(vOB)))
    a("s_mul_i32 %s, %s, 384" % (s(sT0), s(sCB)))
    a("v_add_u32 %s, %s, %s" % (v(vOB), s(sT0), v(vOB)))
    a("s_lshl_b32 %s, %s, 7" % (s(sT0), s(sRB)))
    a("s_lshl_b32 %s, %s, 4" % (s(sT1), s(sLW)))
    a("s_add_u32 %s, %s, %s" % (s(sT0), s(sT0), s(sT1)))
    a("v_add_u32 %s, %s, %s" % (v(vOA0), s(sT0), v(vT)))
    a("s_movk_i32 %s, 1280" % s(sT1))
    a("v_mul_lo_u32 %s, %s, %s" % (v(vOA0), v(vOA0), s(sT1)))
    a("v_add_u32 %s, %d, %s" % (v(vOA1), 8 * 1280, v(vOA0)))
    a("v_lshrrev_b32 %s, 4, %s" % (v(vT2), v(vL)))
    a("v_xor_b32 %s, %s, %s" % (v(vT2), v(vT2), v(vF)))
    a("v_lshl_add_u32 %s, %s, 4, %s" % (v(vOA0), v(vT2), v(vOA0)))
    a("v_xor_b32 %s, 4, %s" % (v(vT2), v(vT2)))
    a("v_lshl_add_u32 %s, %s, 4, %s" % (v(vOA1), v(vT2), v(vOA1)))
    a("s_lshl_b32 %s, %s, 11" % (s(sMA), s(sLW)))
    a("s_lshl_b32 %s, %s, 10" % (s(sMB), s(sLW)))
    if OPT["rot"]:
        a("s_mul_i32 %s, %s, 3" % (s(sT0), s(sCB)))
        a("s_add_u32 %s, %s, %s" % (s(sT0), s(sT0), s(sRB)))
        a("s_mul_i32 %s, %s, 6554" % (s(sT1), s(sT0)))
        a("s_lshr_b32 %s, %s, 16" % (s(sT1), s(sT1)))
        a("s_mul_i32 %s, %s, 10" % (s(sT1), s(sT1)))
        a("s_sub_u32 %s, %s, %s" % (s(sT0), s(sT0), s(sT1)))
    else:
        a("s_mov_b32 %s, 0" % s(sT0))
    a("s_lshl_b32 %s, %s, 7" % (s(sKA), s(sT0)))
    a("s_mul_i32 %s, %s, %d" % (s(sKB), s(sT0), 64 * 3456))
    a("v_and_b32 %s, 15, %s" % (v(vO), v(vL)))
    a("v_lshlrev_b32 %s, 2, %s" % (v(vO), v(vO)))
    a("v_lshlrev_b32 %s, 4, %s" % (v(vSO), v(vL)))
    a("v_add_u32 %s, 0x%x, %s" % (v(vSL), F_STAT, v(vSO)))

    def issueA(step, half):
        slot = step % 3
        if half == 0:
            so = sKA
        else:
            a("s_add_u32 %s, %s, %d" % (s(sT2), s(sKA), 64 * 1280))
            so = sT2
        dma(a, sMA, slot * FA_SLOT + half * 8192, vOA0, SX, so)
        dma(a, sMA, slot * FA_SLOT + half * 8192 + 1024, vOA1, SX, so)
        if half == 1:
            wrap_add(a, sKA, 128, 1280)

    def issueB(h):
        slot = h % 4
        for st in range(6):
            dma(a, sMB, FB_BASE + slot * FB_SLOT + st * 4096, vOB, SG if st < 3 else SU, sKB, (st % 3) * 128)
        wrap_add(a, sKB, 32 * 3456, 640 * 3456)

    def stats_issue():
        a("s_lshl_b32 %s, %s, 10" % (s(sT0), s(sRB)))
        a("s_add_u32 %s, %s, 0x%x" % (s(sT0), s(sT0), STATS_OFF))
        a("buffer_load_dwordx4 %s, %s, %s, %s offen sc1" % (v(vS0, 4), v(vSO), s(SWS, 4), s(sT0)))
        a("s_mul_i32 %s, %s, 768" % (s(sT0), s(sCB)))
        a("s_add_u32 %s, %s, 0x%x" % (s(sT1), s(sT0), COLS_OFF + 1920 * 4))
        a("buffer_load_dwordx4 %s, %s, %s, %s offen sc1" % (v(vS1, 4), v(vSO), s(SWS, 4), s(sT1)))
        a("s_add_u32 %s, %s, 0x%x" % (s(sT1), s(sT0), COLS_OFF + (1920 + 1728) * 4))
        a("buffer_load_dwordx4 %s, %s, %s, %s offen sc1" % (v(vS2, 4), v(vSO), s(SWS, 4), s(sT1)))

    def stats_write():
        a("ds_write_b128 %s, %s" % (v(vSL), v(vS0, 4)))
        a("ds_write_b128 %s, %s offset:1024" % (v(vSL), v(vS1, 4)))
        a("ds_write_b128 %s, %s offset:2048" % (v(vSL), v(vS2, 4)))

    loader_main(a, 2, 6, issueA, issueB, stats_issue, stats_write, vF, vO)
    stamp(a, 4)
    stamp_flush(a, 5, 0, SWS)
    a("s_endpgm")


def ffn_compute(a):
    a.c("---------------- FFN compute wave")
    vL = 1
    vA = [2, 3, 4, 5]
    vB = [6, 7, 8]
    vT, vT2, vT3 = 9, 10, 11
    XF = 16
    WF = 32
    ACC = 64

    def acc(tt, j):
        return ACC + (tt * 6 + j) * 16

    a("s_and_b32 %s, %s, 1" % (s(sT0), s(sW)))
    a("s_lshr_b32 %s, %s, 1" % (s(sT1), s(sW)))
    a("v_and_b32 %s, 31, %s" % (v(vT), v(vL)))
    a("s_lshl_b32 %s, %s, 6" % (s(sT2), s(sT0)))
    a("v_add_u32 %s, %s, %s" % (v(vT), s(sT2), v(vT)))
    a("v_lshlrev_b32 %s, 7, %s" % (v(vT), v(vT)))
    a("v_lshrrev_b32 %s, 5, %s" % (v(vT2), v(vL)))
    a("v_bfe_u32 %s, %s, 1, 3" % (v(vT3), v(vL)))
    a("v_xor_b32 %s, %s, %s" % (v(vT3), v(vT3), v(vT2)))
    for ks in range(4):
        a("v_xor_b32 %s, %d, %s" % (v(vA[ks]), 2 * ks, v(vT3)))
        a("v_lshl_add_u32 %s, %s, 4, %s" % (v(vA[ks]), v(vA[ks]), v(vT)))
    a("v_bfe_u32 %s, %s, 2, 2" % (v(vT), v(vL)))
    a("v_lshl_add_u32 %s, %s, 3, %s" % (v(vT), v(vT2), v(vT)))
    a("v_lshlrev_b32 %s, 7, %s" % (v(vT), v(vT)))
    a("v_bfe_u32 %s, %s, 3, 1" % (v(vT3), v(vL)))
    a("v_lshl_add_u32 %s, %s, 6, %s" % (v(vT), v(vT3), v(vT)))
    a("v_bfe_u32 %s, %s, 4, 1" % (v(vT3), v(vL)))
    a("v_lshl_add_u32 %s, %s, 5, %s" % (v(vT), v(vT3), v(vT)))
    a("v_and_b32 %s, 3, %s" % (v(vT3), v(vL)))
    a("v_lshl_add_u32 %s, %s, 3, %s" % (v(vT), v(vT3), v(vT)))
    a("s_mul_i32 %s, %s, 3" % (s(sT2), s(sT1)))
    for j in range(3):
        a("s_add_u32 %s, %s, %d" % (s(sT3), s(sT2), j))
        a("s_and_b32 %s, %s, 1" % (s(sDA), s(sT3)))
        a("s_lshl_b32 %s, %s, 6" % (s(sDA), s(sDA)))
        a("s_lshr_b32 %s, %s, 1" % (s(sT3), s(sT3)))
        a("s_lshl_b32 %s, %s, 12" % (s(sT3), s(sT3)))
        a("s_add_u32 %s, %s, 0x%x" % (s(sT3), s(sT3), FB_BASE))
        a("v_xor_b32 %s, %s, %s" % (v(vB[j]), s(sDA), v(vT)))
        a("v_add_u32 %s, %s, %s" % (v(vB[j]), s(sT3), v(vB[j])))
    for i in range(0, 192, 2):
        a("v_mov_b64 %s, 0" % v(ACC + i, 2))
    a("s_mov_b32 %s, 0" % s(sCNT))
    a("s_mov_b32 %s, 0" % s(sAS))
    a("s_mov_b32 %s, 0x%x" % (s(sDB), 2 * FB_SLOT))

    def rdW(t, hh, f):
        F_ = hh * 12 + f
        buf = WF + (F_ % 8) * 4
        ks2, j = f // 6, f % 6
        off = hh * FB_SLOT + (j // 3) * 12288 + ks2 * 2048
        t.rd(("W", hh, f), "ds_read_b64_tr_b16 %s, %s offset:%d" % (v(buf, 2), v(vB[j % 3]), off))
        t.rd(("W", hh, f), "ds_read_b64_tr_b16 %s, %s offset:%d" % (v(buf + 2, 2), v(vB[j % 3]), off + 512))

    def rdX(t, ks):
        for tt in range(2):
            t.rd(("X", ks), "ds_read_b128 %s, %s offset:%d" % (v(XF + (ks & 1) * 8 + tt * 4, 4), v(vA[ks]), tt * 4096))

    stamp(a, 1)
    a("s_barrier")
    stamp(a, 2)
    p = LgkmTracker()
    rdX(p, 0)
    for f in range(5):
        rdW(p, 0, f)
    p.emit(a)
    loop = a.newlabel("L_ffn_loop")
    a.label(loop)
    t = LgkmTracker()
    plan = {0: [5, 6], 1: [7, 8], 2: [9], 3: [10], 4: [11]}
    nplan = {8: [0], 9: [1, 2], 10: [3], 11: [4]}
    for hh in range(2):
        for g in range(12):
            ks2, j = g // 6, g % 6
            ks = 2 * hh + ks2
            buf = WF + ((hh * 12 + g) % 8) * 4
            if g == 8:
                t.drain()
                t.txt("s_barrier")
            t.need(("W", hh, g), ("X", ks))
            reads = []
            for f in plan.get(g, []):
                reads.append(("W", hh, f))
            if g == 2:
                reads.append(("X", 2 * hh + 1))
            if g == 8:
                reads.append(("X", (2 * hh + 2) % 4))
            for f in nplan.get(g, []):
                reads.append(("W", 1 - hh, f))
            for tt in range(2):
                t.txt("v_mfma_f32_32x32x16_bf16 %s, %s, %s, %s" % (
                    v(acc(tt, j), 16), v(buf, 4), v(XF + (ks & 1) * 8 + tt * 4, 4), v(acc(tt, j), 16)))
                mine = reads[tt::2] if len(reads) > 1 else (reads if tt == 0 else [])
                for r_ in mine:
                    if r_[0] == "W":
                        rdW(t, r_[1], r_[2])
                    else:
                        rdX(t, r_[1])
                if hh == 1 and g == 5 and tt == 0:
                    t.txt("s_add_u32 %s, %s, 1" % (s(sAS), s(sAS)))
                    t.txt("s_cmp_eq_u32 %s, 3" % s(sAS))
                    t.txt("s_cselect_b32 %s, 0x%x, %s" % (s(sDA), (-2 * FA_SLOT) & 0xffffffff, s(sT3)))
                    t.txt("s_cselect_b32 %s, 0, %s" % (s(sAS), s(sAS)))
                if hh == 1 and g == 5 and tt == 1:
                    for k in range(4):
                        t.txt("v_add_u32 %s, %s, %s" % (v(vA[k]), s(sDA), v(vA[k])))
                if hh == 1 and g == 6 and tt == 0:
                    for k in range(3):
                        t.txt("v_add_u32 %s, %s, %s" % (v(vB[k]), s(sDB), v(vB[k])))
                    t.txt("s_sub_u32 %s, 0, %s" % (s(sDB), s(sDB)))
                if hh == 1 and g == 11 and tt == 0:
                    t.txt("s_add_u32 %s, %s, 1" % (s(sCNT), s(sCNT)))
                    t.txt("s_cmp_lt_u32 %s, 10" % s(sCNT))
    a.l.insert(len(a.l) - 1, "    s_mov_b32 %s, 0x%x" % (s(sT3), FA_SLOT))
    t.emit(a)
    a("s_cbranch_scc1 %s" % loop)
    stamp(a, 3)
    vRS = [2, 4]
    vK = [6, 8]
    vCA, vSTO = 10, 11
    CG, CU = 16, 32
    TMP = 48
    a("s_waitcnt lgkmcnt(0)")
    a("v_and_b32 %s, 31, %s" % (v(vCA), v(vL)))
    a("s_lshl_b32 %s, %s, 6" % (s(sT2), s(sT0)))
    a("v_add_u32 %s, %s, %s" % (v(vCA), s(sT2), v(vCA)))
    a("v_lshlrev_b32 %s, 3, %s" % (v(vCA), v(vCA)))
    a("v_add_u32 %s, 0x%x, %s" % (v(vCA), F_STAT, v(vCA)))
    a("ds_read_b64 %s, %s" % (v(vRS[0], 2), v(vCA)))
    a("ds_read_b64 %s, %s offset:256" % (v(vRS[1], 2), v(vCA)))
    a("v_lshrrev_b32 %s, 5, %s" % (v(vCA), v(vL)))
    a("v_lshlrev_b32 %s, 4, %s" % (v(vCA), v(vCA)))
    a("s_mul_i32 %s, %s, 384" % (s(sT2), s(sT1)))
    a("s_add_u32 %s, %s, 0x%x" % (s(sT2), s(sT2), F_STAT + 1024))
    a("v_add_u32 %s, %s, %s" % (v(vCA), s(sT2), v(vCA)))
    a("v_lshlrev_b32 %s, 4, %s" % (v(vSTO), v(vL)))
    a("s_lshl_b32 %s, %s, 2" % (s(sT2), s(sRB)))
    a("s_lshl_b32 %s, %s, 1" % (s(sT3), s(sT0)))
    a("s_add_u32 %s, %s, %s" % (s(sT2), s(sT2), s(sT3)))
    a("s_mul_i32 %s, %s, %d" % (s(sT2), s(sT2), NKG))
    a("s_mul_i32 %s, %s, 12" % (s(sT3), s(sCB)))
    a("s_add_u32 %s, %s, %s" % (s(sT2), s(sT2), s(sT3)))
    a("s_mul_i32 %s, %s, 6" % (s(sT3), s(sT1)))
    a("s_add_u32 %s, %s, %s" % (s(sT2), s(sT2), s(sT3)))
    a("s_lshl_b32 %s, %s, 10" % (s(sKA), s(sT2)))
    a("s_add_u32 %s, %s, %d" % (s(sKB), s(sKA), NKG * 1024))

    def rdC(j):
        for q in range(4):
            a("ds_read_b128 %s, %s offset:%d" % (v(CG + 4 * q, 4), v(vCA), (32 * j + 8 * q) * 4))
        for q in range(4):
            a("ds_read_b128 %s, %s offset:%d" % (v(CU + 4 * q, 4), v(vCA), 1024 + (32 * j + 8 * q) * 4))

    rdC(0)
    a("s_waitcnt lgkmcnt(8)")
    for tt in range(2):
        a("v_mul_f32 %s, 0x%x, %s" % (v(vK[tt]), f2u(-LOG2E), v(vRS[tt] + 1)))
        a("v_mul_f32 %s, %s, %s" % (v(vK[tt] + 1), v(vRS[tt] + 1), v(vRS[tt] + 1)))
        a("v_rcp_f32 %s, %s" % (v(vK[tt] + 1), v(vK[tt] + 1)))
    for j in range(3):
        a("s_waitcnt lgkmcnt(0)")
        for tt in range(2):
            G_, U_ = acc(tt, j), acc(tt, j + 3)
            for i in range(0, 16, 2):
                a("v_pk_fma_f32 %s, %s, %s, %s op_sel_hi:[1,0,1]" % (v(G_ + i, 2), v(CG + i, 2), v(vRS[tt], 2), v(G_ + i, 2)))
            for i in range(0, 16, 2):
                a("v_pk_fma_f32 %s, %s, %s, %s op_sel_hi:[1,0,1]" % (v(U_ + i, 2), v(CU + i, 2), v(vRS[tt], 2), v(U_ + i, 2)))
            if tt == 1 and j < 2:
                rdC(j + 1)
            for i in range(0, 16, 2):
                a("v_pk_mul_f32 %s, %s, %s op_sel_hi:[1,0]" % (v(TMP + i, 2), v(G_ + i, 2), v(vK[tt], 2)))
            for i in range(16):
                a("v_exp_f32 %s, %s" % (v(TMP + i), v(TMP + i)))
            for i in range(0, 16, 2):
                a("v_pk_mul_f32 %s, %s, %s" % (v(G_ + i, 2), v(G_ + i, 2), v(U_ + i, 2)))
            for i in range(0, 16, 2):
                a("v_pk_fma_f32 %s, %s, %s, %s op_sel:[0,1,1] op_sel_hi:[1,1,1]" % (v(TMP + i, 2), v(TMP + i, 2), v(vK[tt], 2), v(vK[tt], 2)))
            for i in range(16):
                a("v_rcp_f32 %s, %s" % (v(TMP + i), v(TMP + i)))
            a("s_nop 0")
            for i in range(0, 16, 2):
                a("v_pk_mul_f32 %s, %s, %s" % (v(G_ + i, 2), v(G_ + i, 2), v(TMP + i, 2)))
            for i in range(8):
                a("v_cvt_pk_bf16_f32 %s, %s, %s" % (v(U_ + i), v(G_ + 2 * i), v(G_ + 2 * i + 1)))
            sb = sKA if tt == 0 else sKB
            if j == 2:
                a("s_add_u32 %s, %s, 4096" % (s(sb), s(sb)))
            o = (2 * j * 1024) % 4096
            a("buffer_store_dwordx4 %s, %s, %s, %s offen offset:%d" % (v(U_, 4), v(vSTO), s(SWS, 4), s(sb), o))
            a("buffer_store_dwordx4 %s, %s, %s, %s offen offset:%d" % (v(U_ + 4, 4), v(vSTO), s(SWS, 4), s(sb), o + 1024))
    stamp(a, 4)
    stamp_flush(a, 5, 0, SWS)
    a("s_endpgm")


KV_SG = 3328
KV_S = 4 * KV_SG


def qkv_loader(a):
    a.c("---------------- QKV loader wave")
    vL = 1
    vOA = [2, 3, 4, 5, 6, 7]
    vOB = [8, 9, 10, 11]
    vT, vT2, vT3, vT4, vF, vO = 12, 13, 14, 15, 16, 17
    vSO, vSL, vCO, vCL = 18, 19, 20, 21
    vS0, vS1, vS2 = 24, 28, 32
    a("v_lshrrev_b32 %s, 4, %s" % (v(vT), v(vL)))
    a("v_mul_u32_u24 %s, 6, %s" % (v(vT2), v(vT)))
    a("v_bfe_u32 %s, %s, 3, 1" % (v(vT3), v(vL)))
    a("v_add_u32 %s, %s, %s" % (v(vT2), v(vT2), v(vT3)))
    a("s_mul_i32 %s, %s, 48" % (s(sT0), s(sLW)))
    a("s_add_u32 %s, %s, %s" % (s(sT0), s(sT0), s(sROW0)))
    a("v_add_u32 %s, %s, %s" % (v(vT2), s(sT0), v(vT2)))
    a("s_movk_i32 %s, 1280" % s(sT1))
    a("v_mul_lo_u32 %s, %s, %s" % (v(vT2), v(vT2), s(sT1)))
    a("v_and_b32 %s, 7, %s" % (v(vT3), v(vL)))
    a("v_xor_b32 %s, %s, %s" % (v(vT3), v(vT3), v(vT)))
    a("v_xor_b32 %s, 4, %s" % (v(vT4), v(vT3)))
    a("v_lshl_add_u32 %s, %s, 4, %s" % (v(vT3), v(vT3), v(vT2)))
    a("v_lshl_add_u32 %s, %s, 4, %s" % (v(vT4), v(vT4), v(vT2)))
    for ii in range(6):
        t_, par = ii >> 1, ii & 1
        a("v_add_u32 %s, %d, %s" % (v(vOA[ii]), (24 * par + 2 * t_) * 1280, v(vT4 if par else vT3)))
    a("s_lshl_b32 %s, %s, 8" % (s(sT0), s(sLW)))
    a("s_mul_i32 %s, %s, 160" % (s(sT2), s(sCB)))
    a("s_movk_i32 %s, 2185" % s(sT1))
    a("s_movk_i32 %s, 3840" % s(sT3))
    for ii in range(4):
        q = vOB[ii]
        a("v_add_u32 %s, %s, %s" % (v(q), s(sT0), v(vL)))
        if ii:
            a("v_add_u32 %s, %d, %s" % (v(q), 64 * ii, v(q)))
        a("v_mul_lo_u32 %s, %s, %s" % (v(vT), v(q), s(sT1)))
        a("v_lshrrev_b32 %s, 16, %s" % (v(vT), v(vT)))
        a("v_mul_u32_u24 %s, 30, %s" % (v(vT2), v(vT)))
        a("v_sub_u32 %s, %s, %s" % (v(vT2), v(q), v(vT2)))
        a("v_mul_u32_u24 %s, 26, %s" % (v(vT3), v(vT2)))
        a("v_lshrrev_b32 %s, 8, %s" % (v(vT3), v(vT3)))
        a("v_mul_u32_u24 %s, %d, %s" % (v(vT3), 1280 - 160, v(vT3)))
        a("v_lshl_add_u32 %s, %s, 4, %s" % (v(vT3), v(vT2), v(vT3)))
        a("v_bfe_u32 %s, %s, 2, 2" % (v(vT2), v(vT)))
        a("v_lshlrev_b32 %s, 3, %s" % (v(vT2), v(vT2)))
        a("v_lshrrev_b32 %s, 4, %s" % (v(vT4), v(vT)))
        a("v_lshl_add_u32 %s, %s, 2, %s" % (v(vT2), v(vT4), v(vT2)))
        a("v_and_b32 %s, 3, %s" % (v(vT), v(vT)))
        a("v_add_u32 %s, %s, %s" % (v(vT2), v(vT2), v(vT)))
        a("v_mul_lo_u32 %s, %s, %s" % (v(vT2), v(vT2), s(sT3)))
        a("v_add_u32 %s, %s, %s" % (v(vT2), v(vT2), v(vT3)))
        a("v_add_u32 %s, %s, %s" % (v(vT2), s(sT2), v(vT2)))
        if ii == 3:
            a("v_cmp_gt_u32 vcc, 960, %s" % v(q))
            a("v_mov_b32 %s, 0x40000000" % v(vT))
            a("s_nop 0")
            a("v_cndmask_b32 %s, %s, %s, vcc" % (v(q), v(vT), v(vT2)))
        else:
            a("v_mov_b32 %s, %s" % (v(q), v(vT2)))
    a("s_mul_i32 %s, %s, 6144" % (s(sMA), s(sLW)))
    a("s_lshl_b32 %s, %s, 12" % (s(sMB), s(sLW)))
    if OPT["rot"]:
        a("s_add_u32 %s, %s, 5" % (s(sT0), s(sRB)))
        a("s_cmp_ge_u32 %s, 10" % s(sT0))
        a("s_cselect_b32 %s, 10, 0" % s(sT1))
        a("s_sub_u32 %s, %s, %s" % (s(sT0), s(sT0), s(sT1)))
    else:
        a("s_mov_b32 %s, 0" % s(sT0))
    a("s_lshl_b32 %s, %s, 7" % (s(sKA), s(sT0)))
    a("s_mul_i32 %s, %s, %d" % (s(sKB), s(sT0), 64 * 3840))
    a("v_and_b32 %s, 15, %s" % (v(vO), v(vL)))
    a("v_lshlrev_b32 %s, 2, %s" % (v(vO), v(vO)))
    a("v_lshlrev_b32 %s, 4, %s" % (v(vSO), v(vL)))
    a("v_add_u32 %s, 0x%x, %s" % (v(vSL), Q_STAT, v(vSO)))
    a("v_mul_u32_u24 %s, 13, %s" % (v(vT), v(vL)))
    a("v_lshrrev_b32 %s, 8, %s" % (v(vT), v(vT)))
    a("v_mul_u32_u24 %s, %d, %s" % (v(vT), 2560 - 320, v(vT)))
    a("v_add_u32 %s, %s, %s" % (v(vCO), v(vT), v(vSO)))

    def issueA(step, half):
        slot = step % 3
        for ii in range(3 * half, 3 * half + 3):
            dma(a, sMA, slot * QA_SLOT + ii * 1024, vOA[ii], SX, sKA)
        if half == 1:
            wrap_add(a, sKA, 128, 1280)

    def issueB(h):
        slot = h % 4
        for ii in range(4):
            dma(a, sMB, QB_BASE + slot * QB_SLOT + ii * 1024, vOB[ii], SQ, sKB)
        wrap_add(a, sKB, 32 * 3840, 640 * 3840)

    def stats_issue():
        a("s_lshl_b32 %s, %s, 3" % (s(sT0), s(sROW0)))
        a("s_add_u32 %s, %s, 0x%x" % (s(sT0), s(sT0), STATS_OFF))
        a("buffer_load_dwordx4 %s, %s, %s, %s offen sc1" % (v(vS0, 4), v(vSO), s(SWS, 4), s(sT0)))
        a("buffer_load_dwordx4 %s, %s, %s, %s offen offset:1024 sc1" % (v(vS1, 4), v(vSO), s(SWS, 4), s(sT0)))
        a("s_mul_i32 %s, %s, 320" % (s(sT0), s(sCB)))
        a("s_add_u32 %s, %s, 0x%x" % (s(sT0), s(sT0), COLS_OFF))
        a("buffer_load_dwordx4 %s, %s, %s, %s offen sc1" % (v(vS2, 4), v(vCO), s(SWS, 4), s(sT0)))

    def stats_write():
        a("ds_write_b128 %s, %s" % (v(vSL), v(vS0, 4)))
        a("ds_write_b128 %s, %s offset:1024" % (v(vSL), v(vS1, 4)))
        a("ds_write_b128 %s, %s offset:2048" % (v(vSL), v(vS2, 4)))

    loader_main(a, 3, 4, issueA, issueB, stats_issue, stats_write, vF, vO)
    a("v_lshrrev_b32 %s, 4, %s" % (v(vT), v(vL)))
    a("v_mul_u32_u24 %s, %d, %s" % (v(vT), KV_SG, v(vT)))
    a("v_and_b32 %s, 15, %s" % (v(vT2), v(vL)))
    a("v_lshl_add_u32 %s, %s, 4, %s" % (v(vT), v(vT2), v(vT)))
    a("s_mul_i32 %s, %s, %d" % (s(sT0), s(sLW), 2 * KV_S))
    a("v_add_u32 %s, %s, %s" % (v(vT), s(sT0), v(vT)))
    a("v_mov_b64 %s, 0" % v(vS0, 2))
    a("v_mov_b64 %s, 0" % v(vS0 + 2, 2))
    a("ds_write_b128 %s, %s" % (v(vT), v(vS0, 4)))
    a("ds_write_b128 %s, %s offset:%d" % (v(vT), v(vS0, 4), KV_S))
    a("s_waitcnt lgkmcnt(0)")
    a("s_barrier")
    stamp(a, 4)
    stamp_flush(a, 5, 0, SWS)
    a("s_endpgm")


def qkv_compute(a):
    a.c("---------------- QKV compute wave")
    vL = 1
    vA = [2, 3]
    vB = 4
    vT, vT2, vT3 = 5, 6, 7
    XF = 12
    WF = 36
    ACC = 76

    def acc(t_, ct):
        return ACC + (t_ * 15 + ct) * 4

    a("v_and_b32 %s, 15, %s" % (v(vT), v(vL)))
    a("s_mul_i32 %s, %s, 48" % (s(sT0), s(sW)))
    a("v_add_u32 %s, %s, %s" % (v(vT), s(sT0), v(vT)))
    a("v_lshlrev_b32 %s, 7, %s" % (v(vT), v(vT)))
    a("v_lshrrev_b32 %s, 4, %s" % (v(vT2), v(vL)))
    a("v_bfe_u32 %s, %s, 1, 3" % (v(vT3), v(vL)))
    a("v_xor_b32 %s, %s, %s" % (v(vT3), v(vT3), v(vT2)))
    a("v_lshl_add_u32 %s, %s, 4, %s" % (v(vA[0]), v(vT3), v(vT)))
    a("v_xor_b32 %s, 4, %s" % (v(vT3), v(vT3)))
    a("v_lshl_add_u32 %s, %s, 4, %s" % (v(vA[1]), v(vT3), v(vT)))
    a("v_lshrrev_b32 %s, 2, %s" % (v(vT), v(vL)))
    a("v_mul_u32_u24 %s, 480, %s" % (v(vT), v(vT)))
    a("v_and_b32 %s, 3, %s" % (v(vT2), v(vL)))
    a("v_mul_u32_u24 %s, 40, %s" % (v(vT2), v(vT2)))
    a("v_add_u32 %s, %s, %s" % (v(vB), v(vT), v(vT2)))
    a("v_add_u32 %s, 0x%x, %s" % (v(vB), QB_BASE, v(vB)))
    for i in range(0, 180, 2):
        a("v_mov_b64 %s, 0" % v(ACC + i, 2))
    a("s_mov_b32 %s, 0" % s(sCNT))
    a("s_mov_b32 %s, 0" % s(sAS))
    a("s_mov_b32 %s, 0x%x" % (s(sDB), 2 * QB_SLOT))
    a("s_mov_b32 %s, 0x%x" % (s(sT3), QA_SLOT))

    def rdW(t, hh, f):
        buf = WF + ((hh * 15 + f) % 10) * 4
        off = hh * QB_SLOT + (f // 5) * 160 + (f % 5) * 8
        t.rd(("W", hh, f), "ds_read_b64_tr_b16 %s, %s offset:%d" % (v(buf, 2), v(vB), off))
        t.rd(("W", hh, f), "ds_read_b64_tr_b16 %s, %s offset:%d" % (v(buf + 2, 2), v(vB), off + 7680))

    def rdX(t, hh):
        for t_ in range(3):
            t.rd(("X", hh), "ds_read_b128 %s, %s offset:%d" % (v(XF + hh * 12 + t_ * 4, 4), v(vA[hh]), t_ * 2048))

    stamp(a, 1)
    a("s_barrier")
    stamp(a, 2)
    p = LgkmTracker()
    rdX(p, 0)
    for f in range(7):
        rdW(p, 0, f)
    p.emit(a)
    loop = a.newlabel("L_qkv_loop")
    a.label(loop)
    t = LgkmTracker()
    plan = {0: [7, 8], 1: [9, 10], 2: [11], 3: [12], 4: [13], 5: [14]}
    nplan = {10: [0], 11: [1, 2], 12: [3], 13: [4, 5], 14: [6]}
    for hh in range(2):
        for g in range(15):
            buf = WF + ((hh * 15 + g) % 10) * 4
            if g == 10:
                t.drain()
                t.txt("s_barrier")
            t.need(("W", hh, g), ("X", hh))
            reads = [("W", hh, f) for f in plan.get(g, [])]
            if g == 10:
                reads.append(("X", 1 - hh))
            reads += [("W", 1 - hh, f) for f in nplan.get(g, [])]
            for t_ in range(3):
                t.txt("v_mfma_f32_16x16x32_bf16 %s, %s, %s, %s" % (
                    v(acc(t_, g), 4), v(buf, 4), v(XF + hh * 12 + t_ * 4, 4), v(acc(t_, g), 4)))
                if t_ < len(reads):
                    r_ = reads[t_]
                    if r_[0] == "W":
                        rdW(t, r_[1], r_[2])
                    else:
                        rdX(t, r_[1])
                if hh == 1 and g == 6 and t_ == 0:
                    t.txt("s_add_u32 %s, %s, 1" % (s(sAS), s(sAS)))
                    t.txt("s_cmp_eq_u32 %s, 3" % s(sAS))
                if hh == 1 and g == 6 and t_ == 1:
                    t.txt("s_cselect_b32 %s, 0x%x, %s" % (s(sDA), (-2 * QA_SLOT) & 0xffffffff, s(sT3)))
                    t.txt("s_cselect_b32 %s, 0, %s" % (s(sAS), s(sAS)))
                if hh == 1 and g == 7 and t_ == 0:
                    for k in range(2):
                        t.txt("v_add_u32 %s, %s, %s" % (v(vA[k]), s(sDA), v(vA[k])))
                if hh == 1 and g == 7 and t_ == 1:
                    t.txt("v_add_u32 %s, %s, %s" % (v(vB), s(sDB), v(vB)))
                    t.txt("s_sub_u32 %s, 0, %s" % (s(sDB), s(sDB)))
                if hh == 1 and g == 14 and t_ == 1:
                    t.txt("s_add_u32 %s, %s, 1" % (s(sCNT), s(sCNT)))
                    t.txt("s_cmp_lt_u32 %s, 10" % s(sCNT))
    t.emit(a)
    a("s_cbranch_scc1 %s" % loop)
    stamp(a, 3)

    def blk(t_, mat):
        return ACC + (t_ * 15 + mat * 5) * 4

    vTok, vKV0, vKV1 = 2, 3, 4
    vRS = [6, 8, 10]
    CS = 12
    a("s_waitcnt lgkmcnt(0)")
    a("v_bfe_u32 %s, %s, 1, 3" % (v(vTok), v(vL)))
    a("v_mul_u32_u24 %s, 6, %s" % (v(vTok), v(vTok)))
    a("v_and_b32 %s, 1, %s" % (v(vT), v(vL)))
    a("v_add_u32 %s, %s, %s" % (v(vTok), v(vTok), v(vT)))
    a("v_add_u32 %s, %s, %s" % (v(vTok), s(sT0), v(vTok)))
    a("v_lshlrev_b32 %s, 3, %s" % (v(vT), v(vTok)))
    a("v_add_u32 %s, 0x%x, %s" % (v(vT), Q_STAT, v(vT)))
    for t_ in range(3):
        a("ds_read_b64 %s, %s offset:%d" % (v(vRS[t_], 2), v(vT), 16 * t_))
    a("v_lshrrev_b32 %s, 4, %s" % (v(72), v(vL)))
    a("v_mul_u32_u24 %s, 80, %s" % (v(vT), v(72)))
    a("v_add_u32 %s, 0x%x, %s" % (v(vT), Q_STAT + 2048, v(vT)))
    order = [1, 2, 0]
    for mat in order:
        for tq in range(5):
            a("ds_read_b128 %s, %s offset:%d" % (v(CS + (mat * 5 + tq) * 4, 4), v(vT), mat * 320 + tq * 16))
    a("v_mul_u32_u24 %s, %d, %s" % (v(vKV0), KV_SG, v(72)))
    a("v_lshl_add_u32 %s, %s, 4, %s" % (v(vKV0), v(vTok), v(vKV0)))
    a("v_add_u32 %s, 32, %s" % (v(vKV0), v(vKV0)))
    a("v_add_u32 %s, %d, %s" % (v(vKV1), 4 * KV_S, v(vKV0)))

    def kvaddr(unit, srow):
        base = vKV0 if unit < 4 else vKV1
        return v(base), (unit % 4) * KV_S + (srow + 7) * 32

    first = True
    for mi, mat in enumerate(order):
        a("s_waitcnt lgkmcnt(%d)" % (10 - 5 * mi if mi == 0 else 0))
        for t_ in range(3):
            b = blk(t_, mat)
            for i in range(0, 20, 2):
                a("v_pk_fma_f32 %s, %s, %s, %s op_sel_hi:[1,0,1]" % (v(b + i, 2), v(CS + mat * 20 + i, 2), v(vRS[t_], 2), v(b + i, 2)))
            for i in range(0, 20, 2):
                a("v_pk_mul_f32 %s, %s, %s op_sel:[0,1] op_sel_hi:[1,1]" % (v(b + i, 2), v(b + i, 2), v(vRS[t_], 2)))
            if mat != 2:
                for i in range(10):
                    a("v_cvt_pk_bf16_f32 %s, %s, %s" % (v(b + i), v(b + 2 * i), v(b + 2 * i + 1)))
            if mat == 1:
                for u_, n_ in ((0, 4), (1, 4), (2, 2)):
                    ad, off = kvaddr(u_, t_)
                    a("ds_write_b%d %s, %s offset:%d" % (32 * n_, ad, v(b + 4 * u_, n_), off))
            if mat == 2:
                for u_ in range(5):
                    ad, off = kvaddr(3 + u_, t_)
                    a("ds_write_b128 %s, %s offset:%d" % (ad, v(b + 4 * u_, 4), off))
        if mat == 2:
            pass
    a("s_waitcnt lgkmcnt(0)")
    a("s_barrier")
    KH = 6
    for sr in range(-1, -8, -1):
        r0 = KH + (sr + 7) * 10
        for u_, n_ in ((0, 4), (1, 4), (2, 2)):
            ad, off = kvaddr(u_, sr)
            a("ds_read_b%d %s, %s offset:%d" % (32 * n_, v(r0 + 4 * u_, n_), ad, off))

    def Lg(t_, w):
        return blk(t_, 0) + 10 + w

    def krow(sr):
        return blk(sr, 1) if sr >= 0 else KH + (sr + 7) * 10

    nread = 21
    for sr in (2, 1, 0, -1, -2, -3, -4, -5, -6, -7):
        if sr < 0:
            nread -= 3
            a("s_waitcnt lgkmcnt(%d)" % min(nread, 15))
        ts = [t_ for t_ in range(3) if 0 <= t_ - sr <= 7]
        for i in range(10):
            for t_ in ts:
                w = t_ - sr
                if i == 0:
                    a("v_dot2_f32_bf16 %s, %s, %s, 0" % (v(Lg(t_, w)), v(blk(t_, 0) + i), v(krow(sr) + i)))
                else:
                    a("v_dot2c_f32_bf16 %s, %s, %s" % (v(Lg(t_, w)), v(blk(t_, 0) + i), v(krow(sr) + i)))
            if i == 0 and len(ts) < 3:
                a("s_nop 2")
            elif i == 0:
                a("s_nop 0")
    VH = [6, 26, 46]

    def rdV(sr, buf):
        for u_ in range(5):
            ad, off = kvaddr(3 + u_, sr)
            a("ds_read_b128 %s, %s offset:%d" % (v(buf + 4 * u_, 4), ad, off))

    a("s_nop 2")
    rdV(-1, VH[0]); rdV(-2, VH[1]); rdV(-3, VH[2])
    skip = a.newlabel("L_nomask")
    a("s_cmp_lg_u32 %s, 0" % s(sRB))
    a("s_cbranch_scc1 %s" % skip)
    a("v_mov_b32 %s, 0x%x" % (v(70), f2u(-1e30)))
    for t_ in range(3):
        for w in range(t_ + 1, 8):
            a("v_cmp_le_u32 vcc, %d, %s" % (2 * (w - t_), v(vTok)))
            a("s_nop 1")
            a("v_cndmask_b32 %s, %s, %s, vcc" % (v(Lg(t_, w)), v(70), v(Lg(t_, w))))
    a.label(skip)
    c1 = (20 ** -0.5) * LOG2E
    a("s_mov_b32 %s, 0x%x" % (s(sT1), f2u(c1)))
    M = [66, 67, 68]
    for t_ in range(3):
        a("v_max3_f32 %s, %s, %s, %s" % (v(M[t_]), v(Lg(t_, 0)), v(Lg(t_, 1)), v(Lg(t_, 2))))
    for t_ in range(3):
        a("v_max3_f32 %s, %s, %s, %s" % (v(M[t_]), v(M[t_]), v(Lg(t_, 3)), v(Lg(t_, 4))))
    for t_ in range(3):
        a("v_max3_f32 %s, %s, %s, %s" % (v(M[t_]), v(M[t_]), v(Lg(t_, 5)), v(Lg(t_, 6))))
    for t_ in range(3):
        a("v_max_f32 %s, %s, %s" % (v(M[t_]), v(M[t_]), v(Lg(t_, 7))))
    for t_ in range(3):
        a("v_mul_f32 %s, %s, %s" % (v(M[t_]), s(sT1), v(M[t_])))
    for t_ in range(3):
        for w in range(8):
            a("v_fma_f32 %s, %s, %s, -%s" % (v(Lg(t_, w)), v(Lg(t_, w)), s(sT1), v(M[t_])))
    for t_ in range(3):
        for w in range(8):
            a("v_exp_f32 %s, %s" % (v(Lg(t_, w)), v(Lg(t_, w))))
    SM = [70, 72, 74]
    for t_ in range(3):
        a("v_pk_add_f32 %s, %s, %s" % (v(SM[t_], 2), v(Lg(t_, 0), 2), v(Lg(t_, 2), 2)))
    for t_ in range(3):
        a("v_pk_add_f32 %s, %s, %s" % (v(SM[t_], 2), v(SM[t_], 2), v(Lg(t_, 4), 2)))
    for t_ in range(3):
        a("v_pk_add_f32 %s, %s, %s" % (v(SM[t_], 2), v(SM[t_], 2), v(Lg(t_, 6), 2)))
    for t_ in range(3):
        a("v_add_f32 %s, %s, %s" % (v(SM[t_]), v(SM[t_]), v(SM[t_] + 1)))
    for t_ in range(3):
        a("v_rcp_f32 %s, %s" % (v(SM[t_]), v(SM[t_])))
    a("s_nop 0")
    for t_ in range(3):
        for w in range(0, 8, 2):
            a("v_pk_mul_f32 %s, %s, %s op_sel_hi:[1,0]" % (v(Lg(t_, w), 2), v(Lg(t_, w), 2), v(SM[t_], 2)))

    def O(t_):
        return blk(t_, 1)

    started = set()

    def pv(sr, vr):
        for t_ in range(3):
            w = t_ - sr
            if not (0 <= w <= 7):
                continue
            p_ = Lg(t_, w)
            pp = p_ & ~1
            sel = p_ & 1
            for i in range(0, 20, 2):
                if t_ not in started:
                    a("v_pk_mul_f32 %s, %s, %s op_sel:[0,%d] op_sel_hi:[1,%d]" % (v(O(t_) + i, 2), v(vr + i, 2), v(pp, 2), sel, sel))
                else:
                    a("v_pk_fma_f32 %s, %s, %s, %s op_sel:[0,%d,0] op_sel_hi:[1,%d,1]" % (
                        v(O(t_) + i, 2), v(vr + i, 2), v(pp, 2), v(O(t_) + i, 2), sel, sel))
            started.add(t_)

    for sr in (2, 1, 0):
        pv(sr, blk(sr, 2))
    rdV(-4, blk(0, 2)); rdV(-5, blk(1, 2)); rdV(-6, blk(2, 2))
    a("s_waitcnt lgkmcnt(15)")
    pv(-1, VH[0])
    rdV(-7, VH[0])
    pv(-2, VH[1]); pv(-3, VH[2])
    a("s_waitcnt lgkmcnt(5)")
    pv(-4, blk(0, 2)); pv(-5, blk(1, 2)); pv(-6, blk(2, 2))
    a("s_waitcnt lgkmcnt(0)")
    pv(-7, VH[0])
    vG, vGT, vAd, vAd2, vOffG, vOffT = 6, 7, 8, 9, 10, 11
    PK = 12
    a("v_lshrrev_b32 %s, 4, %s" % (v(vG), v(vL)))
    a("v_lshlrev_b32 %s, 10, %s" % (v(vOffG), v(vG)))
    a("v_and_b32 %s, 1, %s" % (v(vOffT), v(vG)))
    a("v_lshlrev_b32 %s, 9, %s" % (v(vOffT), v(vOffT)))
    a("v_lshrrev_b32 %s, 1, %s" % (v(vG), v(vG)))
    a("v_lshl_add_u32 %s, %s, 3, %s" % (v(vOffT), v(vG), v(vOffT)))
    a("v_add_u32 %s, 4096, %s" % (v(vOffT), v(vOffT)))
    a("s_mul_i32 %s, %s, 5" % (s(sT1), s(sCB)))
    a("s_add_u32 %s, %s, 108" % (s(sT1), s(sT1)))
    a("s_lshl_b32 %s, %s, 10" % (s(sT1), s(sT1)))
    a("s_mov_b32 %s, %d" % (s(sT2), NKG * 1024))
    a("s_mul_i32 %s, %s, %d" % (s(sKA), s(sRB), U))
    a("s_add_u32 %s, %s, %d" % (s(sKB), s(sKA), U))
    a("s_min_u32 %s, %s, 2048" % (s(sKB), s(sKB)))
    for t_ in range(3):
        o_ = O(t_)
        pk = PK + 12 * t_
        for i, d in enumerate((0, 2, 8, 10, 4, 6, 12, 14, 16, 18)):
            a("v_cvt_pk_bf16_f32 %s, %s, %s" % (v(pk + i), v(o_ + d), v(o_ + d + 1)))
        a("v_add_u32 %s, %s, %s" % (v(vGT), s(sROW0), v(vTok)))
        if t_:
            a("v_add_u32 %s, %d, %s" % (v(vGT), 2 * t_, v(vGT)))
        a("v_lshrrev_b32 %s, 5, %s" % (v(vAd), v(vGT)))
        a("v_mul_lo_u32 %s, %s, %s" % (v(vAd), v(vAd), s(sT2)))
        a("v_and_b32 %s, 31, %s" % (v(vAd2), v(vGT)))
        a("v_lshl_add_u32 %s, %s, 4, %s" % (v(vAd), v(vAd2), v(vAd)))
        a("v_cmp_le_u32 vcc, %s, %s" % (s(sKA), v(vGT)))
        a("v_cmp_gt_u32 %s, %s, %s" % (s(sMA, 2), s(sKB), v(vGT)))
        a("v_add_u32 %s, %s, %s" % (v(vAd2), v(vAd), v(vOffT)))
        a("v_add_u32 %s, %s, %s" % (v(vAd), v(vAd), v(vOffG)))
        a("s_and_b64 vcc, vcc, %s" % s(sMA, 2))
        a("v_mov_b32 %s, 0x40000000" % v(vG))
        a("s_nop 0")
        a("v_cndmask_b32 %s, %s, %s, vcc" % (v(vAd), v(vG), v(vAd)))
        a("v_cndmask_b32 %s, %s, %s, vcc" % (v(vAd2), v(vG), v(vAd2)))
        a("buffer_store_dwordx4 %s, %s, %s, %s offen" % (v(pk, 4), v(vAd), s(SWS, 4), s(sT1)))
        a("buffer_store_dwordx4 %s, %s, %s, %s offen offset:512" % (v(pk + 4, 4), v(vAd), s(SWS, 4), s(sT1)))
        a("buffer_store_dwordx2 %s, %s, %s, %s offen" % (v(pk + 8, 2), v(vAd2), s(SWS, 4), s(sT1)))
    stamp(a, 4)
    stamp_flush(a, 5, 0, SWS)
    a("s_endpgm")


def bf16_round(a, r, t):
    a("v_cvt_pk_bf16_f32 %s, %s, %s" % (v(r), v(r), v(r)))
    a("v_and_b32 %s, 0xffff0000, %s" % (v(r), v(r)))


def helper(a):
    a.c("---------------- helper workgroup: row stats + column sums.  sCB = helper id 0..15")
    vL, vT, vT2, vOff = 1, 2, 3, 4
    XR = 16
    a("s_lshl_b32 %s, %s, 7" % (s(sT0), s(sCB)))
    a("s_lshl_b32 %s, %s, 4" % (s(sT1), s(sW)))
    a("s_add_u32 %s, %s, %s" % (s(sROW0), s(sT0), s(sT1)))
    a("v_lshrrev_b32 %s, 4, %s" % (v(vT), v(vL)))
    a("v_add_u32 %s, %s, %s" % (v(vT), s(sROW0), v(vT)))
    a("v_mul_u32_u24 %s, 1280, %s" % (v(vOff), v(vT)))
    a("v_and_b32 %s, 15, %s" % (v(vT2), v(vL)))
    a("v_lshl_add_u32 %s, %s, 4, %s" % (v(vOff), v(vT2), v(vOff)))
    for p in range(4):
        a("s_mov_b32 %s, %d" % (s(sT0), p * 4 * 1280))
        for j in range(5):
            a("buffer_load_dwordx4 %s, %s, %s, %s offen offset:%d" % (v(XR + (p * 5 + j) * 4, 4), v(vOff), s(SX, 4), s(sT0), j * 256))
    SH = 76
    lq, lg_, done = a.newlabel("L_hq"), a.newlabel("L_hg"), a.newlabel("L_hd")
    a("s_cmp_lt_u32 %s, 11" % s(sCB))
    a("s_cselect_b32 %s, %s, %s" % (s(SH), s(SG), s(SU)))
    a("s_cselect_b32 %s, %s, %s" % (s(SH + 1), s(SG + 1), s(SU + 1)))
    a("s_cselect_b32 %s, 6, 11" % s(sT0))
    a("s_cselect_b32 %s, 0x%x, 0x%x" % (s(sKB), 1920 * 4, 0) if False else "s_mov_b32 %s, 0x%x" % (s(sKB), 1920 * 4))
    a("s_cselect_b32 %s, 0, 0x%x" % (s(sT1), 1728 * 4))
    a("s_add_u32 %s, %s, %s" % (s(sKB), s(sKB), s(sT1)))
    a("s_sub_u32 %s, %s, %s" % (s(sT0), s(sCB), s(sT0)))
    a("s_mul_i32 %s, %s, 5" % (s(sT1), s(sT0)))
    a("s_min_u32 %s, %s, 2" % (s(sT2), s(sT0)))
    a("s_add_u32 %s, %s, %s" % (s(sT1), s(sT1), s(sT2)))
    a("s_cmp_lt_u32 %s, 2" % s(sT0))
    a("s_cselect_b32 %s, 48, 40" % s(sT2))
    a("s_movk_i32 %s, 3456" % s(sT3))
    a("s_mov_b32 %s, 0x%x" % (s(SH + 2), 640 * 3456))
    a("s_cmp_lt_u32 %s, 6" % s(sCB))
    a("s_cbranch_scc0 %s" % done)
    a("s_mov_b32 %s, %s" % (s(SH), s(SQ)))
    a("s_mov_b32 %s, %s" % (s(SH + 1), s(SQ + 1)))
    a("s_mov_b32 %s, 0x%x" % (s(SH + 2), 640 * 3840))
    a("s_mov_b32 %s, 0" % s(sKB))
    a("s_mul_i32 %s, %s, 5" % (s(sT1), s(sCB)))
    a("s_movk_i32 %s, 40" % s(sT2))
    a("s_movk_i32 %s, 3840" % s(sT3))
    a.label(done)
    a("s_mov_b32 %s, 0x20000" % s(SH + 3))
    vCO = 5
    a("v_lshlrev_b32 %s, 4, %s" % (v(vCO), v(vL)))
    a("s_lshl_b32 %s, %s, 7" % (s(sT0), s(sT1)))
    a("v_add_u32 %s, %s, %s" % (v(vCO), s(sT0), v(vCO)))
    a("v_cmp_gt_u32 vcc, %s, %s" % (s(sT2), v(vL)))
    a("v_mov_b32 %s, 0x40000000" % v(vT2))
    a("s_nop 0")
    a("v_cndmask_b32 %s, %s, %s, vcc" % (v(vCO), v(vT2), v(vCO)))
    a("s_lshl_b32 %s, %s, 8" % (s(sT1), s(sT1)))
    a("s_add_u32 %s, %s, %s" % (s(sKB), s(sKB), s(sT1)))
    a("s_mul_i32 %s, %s, 80" % (s(sKA), s(sW)))
    a("s_mul_i32 %s, %s, %s" % (s(sKA), s(sKA), s(sT3)))
    WR = 96
    NB = 16

    def issueW(b):
        for i in range(NB):
            a("buffer_load_dwordx4 %s, %s, %s, %s offen" % (v(WR + ((b & 1) * NB + i) * 4, 4), v(vCO), s(SH, 4), s(sKA)))
            a("s_add_u32 %s, %s, %s" % (s(sKA), s(sKA), s(sT3)))

    issueW(0)
    issueW(1)
    UP = 224
    vSum, vSq = 6, 8
    RES = 10
    for p in range(4):
        a("s_waitcnt vmcnt(%d)" % (2 * NB + 15 - 5 * p))
        x0 = XR + p * 20
        for i in range(20):
            a("v_lshlrev_b32 %s, 16, %s" % (v(UP), v(x0 + i)))
            a("v_and_b32 %s, 0xffff0000, %s" % (v(UP + 1), v(x0 + i)))
            if i == 0:
                a("v_mov_b64 %s, %s" % (v(vSum, 2), v(UP, 2)))
            else:
                a("v_pk_add_f32 %s, %s, %s" % (v(vSum, 2), v(vSum, 2), v(UP, 2)))
        a("v_add_f32 %s, %s, %s" % (v(vSum), v(vSum), v(vSum + 1)))
        for sh in (8, 4, 2, 1):
            a("s_nop 1")
            a("v_add_f32_dpp %s, %s, %s row_ror:%d row_mask:0xf bank_mask:0xf" % (v(vSum), v(vSum), v(vSum), sh))
        a("v_mul_f32 %s, 0x%x, %s" % (v(vSum), f2u(-1.0 / 640), v(vSum)))
        for i in range(20):
            a("v_lshlrev_b32 %s, 16, %s" % (v(UP), v(x0 + i)))
            a("v_and_b32 %s, 0xffff0000, %s" % (v(UP + 1), v(x0 + i)))
            a("v_pk_add_f32 %s, %s, %s op_sel_hi:[1,0]" % (v(UP, 2), v(UP, 2), v(vSum, 2)))
            if i == 0:
                a("v_pk_mul_f32 %s, %s, %s" % (v(vSq, 2), v(UP, 2), v(UP, 2)))
            else:
                a("v_pk_fma_f32 %s, %s, %s, %s" % (v(vSq, 2), v(UP, 2), v(UP, 2), v(vSq, 2)))
        a("v_add_f32 %s, %s, %s" % (v(vSq), v(vSq), v(vSq + 1)))
        for sh in (8, 4, 2, 1):
            a("s_nop 1")
            a("v_add_f32_dpp %s, %s, %s row_ror:%d row_mask:0xf bank_mask:0xf" % (v(vSq), v(vSq), v(vSq), sh))
        a("v_mul_f32 %s, 0x%x, %s" % (v(vSq), f2u(1.0 / 640), v(vSq)))
        bf16_round(a, vSq, vT)
        a("v_add_f32 %s, 0x%x, %s" % (v(vSq), f2u(1e-5), v(vSq)))
        bf16_round(a, vSq, vT)
        a("v_sqrt_f32 %s, %s" % (v(vSq), v(vSq)))
        a("s_nop 0")
        bf16_round(a, vSq, vT)
        a("v_rcp_f32 %s, %s" % (v(vSum + 1), v(vSq)))
        bf16_round(a, vSum, vT)
        a("v_lshrrev_b32 %s, 4, %s" % (v(vT), v(vL)))
        a("v_add_u32 %s, %s, %s" % (v(vT), s(sROW0), v(vT)))
        a("v_lshlrev_b32 %s, 3, %s" % (v(vT), v(vT)))
        a("v_and_b32 %s, 15, %s" % (v(vT2), v(vL)))
        a("v_cmp_eq_u32 vcc, 0, %s" % v(vT2))
        a("v_mov_b32 %s, 0x40000000" % v(vT2))
        a("s_mov_b32 %s, 0x%x" % (s(sT0), STATS_OFF + p * 32))
        a("v_cndmask_b32 %s, %s, %s, vcc" % (v(vT), v(vT2), v(vT)))
        a("v_mov_b64 %s, %s" % (v(RES, 2), v(vSum, 2)))
        a("buffer_store_dwordx2 %s, %s, %s, %s offen sc1" % (v(RES, 2), v(vT), s(SWS, 4), s(sT0)))
        a("s_waitcnt vmcnt(%d)" % 63) if False else None
        RES ^= 0
    CA = 16
    for i in range(0, 8, 2):
        a("v_mov_b64 %s, 0" % v(CA + i, 2))
    for b in range(5):
        if b == 0:
            n = NB + 4
        elif b == 1:
            n = 4 + NB
        elif b < 4:
            n = NB
        else:
            n = 0
        a("s_waitcnt vmcnt(%d)" % n)
        for i in range(NB):
            r0 = WR + ((b & 1) * NB + i) * 4
            for j in range(4):
                a("v_lshlrev_b32 %s, 16, %s" % (v(UP + 2 * j), v(r0 + j)))
                a("v_and_b32 %s, 0xffff0000, %s" % (v(UP + 2 * j + 1), v(r0 + j)))
            for j in range(4):
                a("v_pk_add_f32 %s, %s, %s" % (v(CA + 2 * j, 2), v(CA + 2 * j, 2), v(UP + 2 * j, 2)))
        if b + 2 < 5:
            issueW(b + 2)
    a("v_lshlrev_b32 %s, 5, %s" % (v(vT), v(vL)))
    a("s_lshl_b32 %s, %s, 11" % (s(sT0), s(sW)))
    a("v_add_u32 %s, %s, %s" % (v(vT), s(sT0), v(vT)))
    a("ds_write_b128 %s, %s" % (v(vT), v(CA, 4)))
    a("ds_write_b128 %s, %s offset:16" % (v(vT), v(CA + 4, 4)))
    a("s_waitcnt vmcnt(0) lgkmcnt(0)")
    a("s_barrier")
    a("v_lshlrev_b32 %s, 2, v0" % v(vT))
    for w in range(8):
        a("ds_read_b32 %s, %s offset:%d" % (v(CA + w), v(vT), w * 2048))
    a("s_waitcnt lgkmcnt(0)")
    for w in range(1, 8):
        a("v_add_f32 %s, %s, %s" % (v(CA), v(CA), v(CA + w)))
    a("s_lshl_b32 %s, %s, 3" % (s(sT2), s(sT2)))
    a("v_cmp_gt_u32 vcc, %s, v0" % s(sT2))
    a("v_mov_b32 %s, 0x40000000" % v(vT2))
    a("s_add_u32 %s, %s, 0x%x" % (s(sKB), s(sKB), COLS_OFF))
    a("v_cndmask_b32 %s, %s, %s, vcc" % (v(vT), v(vT2), v(vT)))
    a("buffer_store_dword %s, %s, %s, %s offen sc1" % (v(CA), v(vT), s(SWS, 4), s(sKB)))
    a("s_waitcnt vmcnt(0)")
    a("s_barrier")
    fin = a.newlabel("L_hfin")
    a("s_cmp_lg_u32 %s, 0" % s(sW))
    a("s_cbranch_scc1 %s" % fin)
    a("v_cmp_eq_u32 vcc, 0, %s" % v(vL))
    a("v_mov_b32 %s, 0x40000000" % v(vT2))
    a("v_mov_b32 %s, 0" % v(vT))
    a("v_cndmask_b32 %s, %s, %s, vcc" % (v(vT), v(vT2), v(vT)))
    a("v_mov_b32 %s, 1" % v(vT2))
    a("s_lshl_b32 %s, %s, 2" % (s(sT0), s(sCB)))
    a("buffer_store_dword %s, %s, %s, %s offen sc1" % (v(vT2), v(vT), s(SDBG, 4), s(sT0)))
    a.label(fin)
    stamp(a, 4)
    stamp_flush(a, 5, 0, SWS)
    a("s_endpgm")


def k1(a):
    a.l.append(".p2align 8")
    a.label("k1_kernel")
    a("s_cmp_ge_u32 s2, 256")
    a("s_cbranch_scc1 L_k1_exit")
    stamp(a, 0)
    a("s_load_dwordx4 s[4:7], s[0:1], 0")
    a("s_load_dwordx4 s[8:11], s[0:1], 32")
    a("s_load_dwordx4 s[12:15], s[0:1], 64")
    a("v_lshrrev_b32 v1, 6, v0")
    a("s_and_b32 %s, s2, 7" % s(sT0))
    a("v_readfirstlane_b32 %s, v1" % s(sW))
    a("v_and_b32 v1, 63, v0")
    a("s_lshr_b32 %s, s2, 3" % s(sT1))
    a("s_sub_u32 %s, %s, 4" % (s(sLW), s(sW)))
    a("s_waitcnt lgkmcnt(0)")
    srd(a, SX, 4, S * D * 2)
    srd(a, SQ, 6, D * 1920 * 2)
    srd(a, SG, 8, D * F * 2)
    srd(a, SU, 10, D * F * 2)
    srd(a, SDBG, 12, 256)
    srd(a, SWS, 14, WS_BYTES)
    a("s_cmp_lt_u32 %s, 18" % s(sT1))
    a("s_cbranch_scc0 L_k1_notffn")
    a("s_mul_i32 %s, %s, 18" % (s(sT0), s(sT0)))
    a("s_add_u32 %s, %s, %s" % (s(sT0), s(sT0), s(sT1)))
    a("s_lshr_b32 %s, %s, 4" % (s(sCB), s(sT0)))
    a("s_and_b32 %s, %s, 15" % (s(sRB), s(sT0)))
    a("s_cmp_lt_u32 %s, 4" % s(sW))
    a("s_cbranch_scc1 L_ffn_compute")
    ffn_loader(a)
    a.label("L_k1_notffn")
    a("s_cmp_lt_u32 %s, 30" % s(sT1))
    a("s_cbranch_scc0 L_helper")
    a("s_mov_b32 %s, %s" % (s(sCB), s(sT0)))
    a("s_sub_u32 %s, %s, 18" % (s(sRB), s(sT1)))
    a("s_mul_i32 %s, %s, %d" % (s(sROW0), s(sRB), U))
    a("s_max_u32 %s, %s, 14" % (s(sROW0), s(sROW0)))
    a("s_sub_u32 %s, %s, 14" % (s(sROW0), s(sROW0)))
    a("s_cmp_lt_u32 %s, 4" % s(sW))
    a("s_cbranch_scc1 L_qkv_compute")
    qkv_loader(a)
    a.label("L_ffn_compute")
    ffn_compute(a)
    a.label("L_qkv_compute")
    qkv_compute(a)
    a.label("L_helper")
    a("s_lshl_b32 %s, %s, 1" % (s(sCB), s(sT0)))
    a("s_add_u32 %s, %s, %s" % (s(sCB), s(sCB), s(sT1)))
    a("s_sub_u32 %s, %s, 30" % (s(sCB), s(sCB)))
    helper(a)
    a.label("L_k1_exit")
    a("s_endpgm")


def k2(a):
    SXX, SWO, SWD, SAC, SOUT = 16, 20, 24, 28, 32
    sR, sKH = 43, 57
    a.l.append(".p2align 8")
    a.label("k2_kernel")
    a("s_cmp_ge_u32 s2, 160")
    a("s_cbranch_scc1 L_k2_exit")
    stamp(a, 0)
    a("s_load_dwordx2 s[4:5], s[0:1], 0")
    a("s_load_dwordx2 s[6:7], s[0:1], 16")
    a("s_load_dwordx4 s[8:11], s[0:1], 48")
    a("s_load_dwordx2 s[14:15], s[0:1], 72")
    a("v_lshrrev_b32 v1, 6, v0")
    a("s_and_b32 %s, s2, 7" % s(sT0))
    a("v_readfirstlane_b32 %s, v1" % s(sW))
    a("v_and_b32 v1, 63, v0")
    a("s_lshr_b32 %s, s2, 3" % s(sT1))
    a("s_cmp_ge_u32 %s, 10" % s(sT1))
    a("s_cselect_b32 %s, 1, 0" % s(sT2))
    a("s_cselect_b32 %s, 10, 0" % s(sT3))
    a("s_sub_u32 %s, %s, %s" % (s(sCB), s(sT1), s(sT3)))
    a("s_lshl_b32 %s, %s, 1" % (s(sRB), s(sT0)))
    a("s_add_u32 %s, %s, %s" % (s(sRB), s(sRB), s(sT2)))
    a("s_and_b32 %s, %s, 3" % (s(sR), s(sW)))
    a("s_lshr_b32 %s, %s, 2" % (s(sKH), s(sW)))
    vL, vXO, vWD, vWN, vWS, vT, vT2, vT3 = 1, 2, 3, 4, 5, 6, 7, 0
    vRW = [6, 7]
    WF = 8
    ACCF, ACCS = 32, 64
    XR = 96
    a("v_lshlrev_b32 %s, 4, %s" % (v(vXO), v(vL)))
    a("v_bfe_u32 %s, %s, 4, 1" % (v(vT), v(vL)))
    a("v_lshlrev_b32 %s, 2, %s" % (v(vT), v(vT)))
    a("v_and_b32 %s, 7, %s" % (v(vT2), v(vL)))
    a("v_xor_b32 %s, %s, %s" % (v(vT), v(vT), v(vT2)))
    a("v_lshlrev_b32 %s, 4, %s" % (v(vT), v(vT)))
    a("s_lshl_b32 %s, %s, 7" % (s(sT0), s(sCB)))
    a("v_add_u32 %s, %s, %s" % (v(vT), s(sT0), v(vT)))
    a("v_lshrrev_b32 %s, 3, %s" % (v(vT2), v(vL)))
    a("v_mul_u32_u24 %s, 1280, %s" % (v(vT2), v(vT2)))
    a("v_add_u32 %s, %s, %s" % (v(vT2), v(vT2), v(vT)))
    a("s_mul_i32 %s, %s, 864" % (s(sT0), s(sKH)))
    a("s_mul_i32 %s, %s, 24" % (s(sT1), s(sR)))
    a("s_add_u32 %s, %s, %s" % (s(sT0), s(sT0), s(sT1)))
    a("s_mul_i32 %s, %s, 1280" % (s(sT0), s(sT0)))
    a("v_add_u32 %s, %s, %s" % (v(vWD), s(sT0), v(vT2)))
    a("s_mul_i32 %s, %s, 320" % (s(sT0), s(sKH)))
    a("s_mul_i32 %s, %s, 20" % (s(sT1), s(sR)))
    a("s_add_u32 %s, %s, %s" % (s(sT1), s(sT0), s(sT1)))
    a("s_mul_i32 %s, %s, 1280" % (s(sT1), s(sT1)))
    a("v_add_u32 %s, %s, %s" % (v(vWN), s(sT1), v(vT2)))
    a("v_lshrrev_b32 %s, 5, %s" % (v(vT2), v(vL)))
    a("v_mul_u32_u24 %s, 20, %s" % (v(vT2), v(vT2)))
    a("v_bfe_u32 %s, %s, 3, 2" % (v(vWS), v(vL)))
    a("v_add_u32 %s, %s, %s" % (v(vT2), v(vT2), v(vWS)))
    a("s_mul_i32 %s, %s, 40" % (s(sT1), s(sR)))
    a("s_add_u32 %s, %s, %s" % (s(sT1), s(sT0), s(sT1)))
    a("s_add_u32 %s, %s, 16" % (s(sT1), s(sT1)))
    a("v_add_u32 %s, %s, %s" % (v(vT2), s(sT1), v(vT2)))
    a("v_mul_u32_u24 %s, 1280, %s" % (v(vT2), v(vT2)))
    a("v_add_u32 %s, %s, %s" % (v(vWS), v(vT2), v(vT)))
    sXH, sXO, sLD, sLN, sLS = 48, 49, 50, 51, 52
    a("s_lshl_b32 %s, %s, 2" % (s(sT0), s(sRB)))
    a("s_add_u32 %s, %s, %s" % (s(sT0), s(sT0), s(sR)))
    a("s_mul_i32 %s, %s, %d" % (s(sT0), s(sT0), NKG))
    a("s_mul_i32 %s, %s, 54" % (s(sT1), s(sKH)))
    a("s_add_u32 %s, %s, %s" % (s(sXH), s(sT0), s(sT1)))
    a("s_lshl_b32 %s, %s, 10" % (s(sXH), s(sXH)))
    a("s_mul_i32 %s, %s, 20" % (s(sT1), s(sKH)))
    a("s_add_u32 %s, %s, %s" % (s(sXO), s(sT0), s(sT1)))
    a("s_add_u32 %s, %s, 108" % (s(sXO), s(sXO)))
    a("s_lshl_b32 %s, %s, 10" % (s(sXO), s(sXO)))
    a("s_mul_i32 %s, %s, 81920" % (s(sT0), s(sKH)))
    a("s_mul_i32 %s, %s, 3072" % (s(sT1), s(sR)))
    a("s_add_u32 %s, %s, %s" % (s(sLD), s(sT0), s(sT1)))
    a("s_lshl_b32 %s, %s, 11" % (s(sT1), s(sR)))
    a("s_add_u32 %s, %s, %s" % (s(sLN), s(sT0), s(sT1)))
    a("s_lshr_b32 %s, %s, 1" % (s(sT1), s(sR)))
    a("s_mul_i32 %s, %s, 10240" % (s(sT1), s(sT1)))
    a("s_and_b32 %s, %s, 1" % (s(sT2), s(sR)))
    a("s_lshl_b32 %s, %s, 10" % (s(sT2), s(sT2)))
    a("s_add_u32 %s, %s, %s" % (s(sT1), s(sT1), s(sT2)))
    a("s_add_u32 %s, %s, %s" % (s(sLS), s(sT0), s(sT1)))
    a("s_add_u32 %s, %s, 8192" % (s(sLS), s(sLS)))
    a("s_waitcnt lgkmcnt(0)")
    srd(a, SXX, 4, S * D * 2)
    srd(a, SWO, 6, D * D * 2)
    srd(a, SWD, 8, F * D * 2)
    srd(a, SOUT, 10, S * D * 2)
    srd(a, SAC, 14, WS_BYTES)
    chunks = []
    for c in range(9):
        chunks.append(dict(kind="h", idx=c, ng=6, lds=(c % 6) * 12288, xr=XR + (c % 6) * 24, after=(-1 if c < 6 else c - 5)))
    chunks.append(dict(kind="o", idx=0, ng=10, lds=36864, xr=XR + 72, after=5))
    chunks.append(dict(kind="o", idx=1, ng=10, lds=61440, xr=XR + 120, after=6))
    issued = []

    def issue(ci):
        ch = chunks[ci]
        if ch["kind"] == "h":
            for ii in range(3):
                a("s_mov_b32 %s, %d" % (s(sT0), (96 * ch["idx"] + 8 * ii) * 1280))
                dma(a, sLD, ch["lds"] + ii * 1024, vWD, SWD, sT0)
                issued.append(ci)
            base, g0 = sXH, 6 * ch["idx"]
        else:
            for hs in range(2):
                for e in range(2):
                    a("s_mov_b32 %s, %d" % (s(sT0), (160 * ch["idx"] + 80 * hs + 8 * e) * 1280))
                    dma(a, sLN, ch["lds"] + hs * 10240 + e * 1024, vWN, SWO, sT0)
                    issued.append(ci)
            a("s_mov_b32 %s, %d" % (s(sT0), 160 * ch["idx"] * 1280))
            dma(a, sLS, ch["lds"], vWS, SWO, sT0)
            issued.append(ci)
            base, g0 = sXO, 10 * ch["idx"]
        for g in range(ch["ng"]):
            if g % 4 == 0:
                a("s_add_u32 %s, %s, %d" % (s(sT1), s(base), (g0 + g) * 1024))
            a("buffer_load_dwordx4 %s, %s, %s, %s offen offset:%d" % (v(ch["xr"] + 4 * g, 4), v(vXO), s(SAC, 4), s(sT1), (g % 4) * 1024))
            issued.append(ci)

    for ci in range(6):
        issue(ci)
    a("v_lshrrev_b32 %s, 5, %s" % (v(vT3), v(vL)))
    a("v_bfe_u32 %s, %s, 2, 2" % (v(vT), v(vL)))
    a("v_lshl_add_u32 %s, %s, 2, %s" % (v(vT), v(vT3), v(vT)))
    a("v_lshlrev_b32 %s, 7, %s" % (v(vT), v(vT)))
    a("v_bfe_u32 %s, %s, 3, 1" % (v(vT3), v(vL)))
    a("v_lshl_add_u32 %s, %s, 6, %s" % (v(vT), v(vT3), v(vT)))
    a("v_bfe_u32 %s, %s, 4, 1" % (v(vT3), v(vL)))
    a("v_lshl_add_u32 %s, %s, 5, %s" % (v(vT), v(vT3), v(vT)))
    a("v_and_b32 %s, 3, %s" % (v(vT3), v(vL)))
    a("v_lshl_add_u32 %s, %s, 3, %s" % (v(vT), v(vT3), v(vT)))
    a("s_lshl_b32 %s, %s, 6" % (s(sT0), s(sKH)))
    a("v_xor_b32 %s, %s, %s" % (v(vT), s(sT0), v(vT)))
    a("s_mul_i32 %s, %s, 81920" % (s(sT0), s(sKH)))
    a("v_add_u32 %s, %s, %s" % (v(vRW[0]), s(sT0), v(vT)))
    a("v_xor_b32 %s, 64, %s" % (v(vRW[1]), v(vRW[0])))
    for i in range(0, 64, 2):
        a("v_mov_b64 %s, 0" % v(ACCF + i, 2))
    hi_mode = [False]
    XE = XR
    wdepth = 3
    gcount = 0
    for ci, ch in enumerate(chunks):
        n_after = sum(1 for c in issued if c > ci)
        last = max(i for i, c in enumerate(issued) if c == ci)
        n_after = len(issued) - 1 - last
        a("s_waitcnt vmcnt(%d)" % n_after)
        a("s_barrier")
        if ci == 0:
            stamp(a, 1)
        need_hi = ch["lds"] + ch["ng"] * 2048 > 65536
        if need_hi != hi_mode[0]:
            for k in range(2):
                a("v_add_u32 %s, 0x%x, %s" % (v(vRW[k]), (32768 if need_hi else -32768) & 0xffffffff, v(vRW[k])))
            hi_mode[0] = need_hi
        lo = ch["lds"] - (32768 if need_hi else 0)
        accb = ACCF if ch["kind"] == "h" else ACCS

        def rd(g):
            for k in range(2):
                buf = WF + (((gcount + g) % wdepth) * 2 + k) * 4
                a("ds_read_b64_tr_b16 %s, %s offset:%d" % (v(buf, 2), v(vRW[k]), lo + g * 2048))
                a("ds_read_b64_tr_b16 %s, %s offset:%d" % (v(buf + 2, 2), v(vRW[k]), lo + g * 2048 + 1024))

        rd(0)
        rd(1)
        for c2, ch2 in enumerate(chunks):
            if ch2["after"] == ci:
                issue(c2)
        if ci == 7:
            a("v_and_b32 %s, 31, %s" % (v(vWD), v(vL)))
            a("s_lshl_b32 %s, %s, 7" % (s(sT0), s(sRB)))
            a("s_lshl_b32 %s, %s, 5" % (s(sT1), s(sR)))
            a("s_add_u32 %s, %s, %s" % (s(sT0), s(sT0), s(sT1)))
            a("v_add_u32 %s, %s, %s" % (v(vWD), s(sT0), v(vWD)))
            a("v_mul_u32_u24 %s, 1280, %s" % (v(vWD), v(vWD)))
            a("v_lshrrev_b32 %s, 5, %s" % (v(vWN), v(vL)))
            a("v_lshl_add_u32 %s, %s, 3, %s" % (v(vWD), v(vWN), v(vWD)))
            a("s_lshl_b32 %s, %s, 7" % (s(sT0), s(sCB)))
            a("s_lshl_b32 %s, %s, 6" % (s(sT1), s(sKH)))
            a("s_add_u32 %s, %s, %s" % (s(sT0), s(sT0), s(sT1)))
            a("v_add_u32 %s, %s, %s" % (v(vWD), s(sT0), v(vWD)))
            for q in range(4):
                a("buffer_load_dwordx2 %s, %s, %s, 0 offen offset:%d" % (v(XE + 2 * q, 2), v(vWD), s(SXX, 4), 16 * q))
                issued.append(99)
        for g in range(ch["ng"]):
            if g + 2 < ch["ng"]:
                rd(g + 2)
                a("s_waitcnt lgkmcnt(8)")
            elif g + 1 < ch["ng"]:
                a("s_waitcnt lgkmcnt(4)")
            else:
                a("s_waitcnt lgkmcnt(0)")
            for k in range(2):
                buf = WF + (((gcount + g) % wdepth) * 2 + k) * 4
                a("v_mfma_f32_32x32x16_bf16 %s, %s, %s, %s" % (v(accb + 16 * k, 16), v(buf, 4), v(ch["xr"] + 4 * g, 4), v(accb + 16 * k, 16)))
        gcount += ch["ng"]
    stamp(a, 2)
    a("s_mul_i32 %s, %s, 81920" % (s(sT0), s(sKH)))
    a("s_lshl_b32 %s, %s, 13" % (s(sT1), s(sR)))
    a("s_add_u32 %s, %s, %s" % (s(sT0), s(sT0), s(sT1)))
    a("v_add_u32 %s, %s, %s" % (v(vT), s(sT0), v(vXO)))
    a("s_sub_u32 %s, 1, %s" % (s(sT2), s(sKH)))
    a("s_mul_i32 %s, %s, 81920" % (s(sT0), s(sT2)))
    a("s_add_u32 %s, %s, %s" % (s(sT0), s(sT0), s(sT1)))
    a("v_add_u32 %s, %s, %s" % (v(vT2), s(sT0), v(vXO)))
    for i in range(4):
        a("ds_write_b128 %s, %s offset:%d" % (v(vT), v(ACCF + 16 + 4 * i, 4), i * 1024))
    a("s_nop 7")
    for i in range(4):
        a("ds_write_b128 %s, %s offset:%d" % (v(vT), v(ACCS + 16 + 4 * i, 4), 4096 + i * 1024))
    a("s_waitcnt lgkmcnt(0)")
    a("s_barrier")
    R0 = XR + 32
    for i in range(8):
        a("ds_read_b128 %s, %s offset:%d" % (v(R0 + 4 * i, 4), v(vT2), i * 1024))
    a("s_waitcnt lgkmcnt(4)")
    for i in range(0, 16, 2):
        a("v_pk_add_f32 %s, %s, %s" % (v(ACCF + i, 2), v(ACCF + i, 2), v(R0 + i, 2)))
    TM = XR + 64
    for i in range(16):
        a("v_mul_f32 %s, 0x%x, %s" % (v(TM + i), f2u(-LOG2E), v(ACCF + i)))
    for i in range(16):
        a("v_exp_f32 %s, %s" % (v(TM + i), v(TM + i)))
    a("s_waitcnt lgkmcnt(0)")
    for i in range(0, 16, 2):
        a("v_pk_add_f32 %s, %s, %s" % (v(ACCS + i, 2), v(ACCS + i, 2), v(R0 + 16 + i, 2)))
    for i in range(0, 16, 2):
        a("v_pk_add_f32 %s, %s, 1.0 op_sel_hi:[1,0]" % (v(TM + i, 2), v(TM + i, 2)))
    for i in range(16):
        a("v_rcp_f32 %s, %s" % (v(TM + i), v(TM + i)))
    for i in range(0, 16, 2):
        a("v_pk_mul_f32 %s, %s, %s" % (v(ACCF + i, 2), v(ACCF + i, 2), v(ACCS + i, 2)))
    a("s_waitcnt vmcnt(0)")
    for i in range(8):
        a("v_lshlrev_b32 %s, 16, %s" % (v(ACCS + 2 * i), v(XE + i)))
        a("v_and_b32 %s, 0xffff0000, %s" % (v(ACCS + 2 * i + 1), v(XE + i)))
    for i in range(0, 16, 2):
        a("v_pk_fma_f32 %s, %s, %s, %s" % (v(ACCF + i, 2), v(ACCF + i, 2), v(TM + i, 2), v(ACCS + i, 2)))
    for i in range(8):
        a("v_cvt_pk_bf16_f32 %s, %s, %s" % (v(TM + i), v(ACCF + 2 * i), v(ACCF + 2 * i + 1)))
    for q in range(4):
        a("buffer_store_dwordx2 %s, %s, %s, 0 offen offset:%d" % (v(TM + 2 * q, 2), v(vWD), s(SOUT, 4), 16 * q))
    stamp(a, 3)
    stamp_flush(a, 4, 1, SAC, vt=2)
    a.label("L_k2_exit")
    a("s_endpgm")


HEADER = """; Fused LayerNorm + local dilated attention + SwiGLU FFN, two launches (generated by dev/gen.py)
; @launch kernel=k1_kernel grid=(256,1,1) block=(512,1,1) lds=163840
; @launch kernel=k2_kernel grid=(160,1,1) block=(512,1,1) lds=163840
.amdgcn_target "amdgcn-amd-amdhsa--gfx950"
.text
"""

KD = """.amdhsa_kernel %s
  .amdhsa_next_free_vgpr 256
  .amdhsa_next_free_sgpr 96
  .amdhsa_accum_offset 256
  .amdhsa_group_segment_fixed_size 0
  .amdhsa_kernarg_size 80
  .amdhsa_user_sgpr_count 2
  .amdhsa_user_sgpr_kernarg_segment_ptr 1
  .amdhsa_system_sgpr_workgroup_id_x 1
  .amdhsa_float_denorm_mode_32 3
.end_amdhsa_kernel
"""


def build():
    a = Asm()
    for k in ("k1_kernel", "k2_kernel"):
        a.l.append(".globl %s" % k)
        a.l.append(".type %s,@function" % k)
    k1(a)
    k2(a)
    out = HEADER + a.text()
    out += '.section .rodata,"a"\n.p2align 6\n' + KD % "k1_kernel" + ".p2align 6\n" + KD % "k2_kernel"
    return out


if __name__ == "__main__":
    outp = "cdna_kernels/%s.s" % NAME
    for arg in sys.argv[1:]:
        if arg.startswith("-o"):
            outp = arg[2:]
        elif "=" in arg:
            k, val = arg.split("=")
            OPT[k] = eval(val)
    open(outp, "w").write(build())
    print("wrote", outp)
```

```python
import sys, struct

NAME = "recurrent_scan__sliding_local_dilated__swiglu_ffn__prompt"
OPT = dict(stamps=False, stampset=0, rot=0, noflag=False, cs_h=0, pfcode=True, pfw2=True, pfw2_h=8, k2rot=2,
           la=8, pfwo=True, early=True, thr=160, slp=2, fst=0, lw=4, laa=5, qpace=0, ogate=2, aprio=0, part=2, wsk=1, wper=4)

S, D, F = 2048, 640, 1728
NKG = 148
STATS_OFF = 0xA00000
COLS_OFF = 0xA10000
STAMP_OFF = 0xA60000
SBUF_OFF = 0xB00000
FLG_OFF = 0xE00000
FSTR = 4352
WS_BYTES = 0xF20000
U = 178
LOG2E = 1.4426950408889634
OOB = 0x40000000
MASTER = 255

A_SLOT, B_BASE, B_SLOT, STAT = 24576, 73728, 16384, 155648
KV_SG = 3328
KV_S = 4 * KV_SG
D_KH, D_REG = 77824, 36864

pX, pQ, pWO, pG, pU, pWD, pOUT, pDBG, pWS = 4, 6, 8, 12, 14, 16, 18, 20, 22
SX, SWS, SDBG, SB0, SB1, SCS = 24, 28, 32, 36, 40, 44
SW3, SOUT, SWO = SCS, SB1, 76
sSPIN = 3
sW, sRB, sCB, sLW = 48, 49, 50, 51
sT0, sT1, sT2, sT3 = 52, 53, 54, 55
sKA, sKB, sMA, sMB = 56, 57, 58, 59
sCNT, sDA, sDB, sAS = 60, 61, 62, 63
sROW0, sSIG = 64, 65
sINCB, sLIMB, sROLE, sCSO, sCSD, sSTR = 66, 67, 68, 69, 70, 71
sCOL0, sRB3, sCB3, sGO = 72, 73, 74, 75
sR, sKH, sRW, sRX, sLD, sXB, sXO, sRT = sLIMB, sAS, sCNT, sDA, sDB, sMA, sSIG, sINCB
sR0 = sRB3
sST, NST = 80, 10
sPAR = sSTR
LCNT = STAT + 3072


def f2u(x):
    return struct.unpack("<I", struct.pack("<f", x))[0]


class Asm:
    def __init__(self):
        self.l = []
        self.nlab = 0

    def __call__(self, fmt, *args):
        self.l.append("    " + (fmt % args if args else fmt))

    def label(self, s_):
        self.l.append(s_ + ":")

    def new(self, p="L"):
        self.nlab += 1
        return "%s_%d" % (p, self.nlab)

    def c(self, s_):
        self.l.append("    ; " + s_)

    def text(self):
        return "\n".join(self.l) + "\n"


def v(i, n=1):
    return "v%d" % i if n == 1 else "v[%d:%d]" % (i, i + n - 1)


def s(i, n=1):
    return "s%d" % i if n == 1 else "s[%d:%d]" % (i, i + n - 1)


def srd(a, d, base, nbytes):
    a("s_mov_b32 %s, %s", s(d), s(base))
    a("s_and_b32 %s, %s, 0xffff", s(d + 1), s(base + 1))
    a("s_mov_b32 %s, 0x%x", s(d + 2), nbytes)
    a("s_mov_b32 %s, 0x20000", s(d + 3))


def stamp(a, idx, cyc=None, set_=0):
    if not OPT["stamps"]:
        return
    if OPT["stampset"] == 2:
        if set_ == 2 or idx in (0, 9):
            a("s_memrealtime %s", s(sST + 2 * idx, 2))
        return
    if set_ == 2:
        return
    if idx in (5, 6, 7, 8) and set_ != OPT["stampset"]:
        return
    if OPT.get("cyc") and idx in (1, 2):
        return
    a("s_memrealtime %s", s(sST + 2 * idx, 2))
    if cyc is not None and OPT.get("cyc"):
        a("s_memtime %s", s(sST + 2 * (cyc - 9), 2))


def stamp_flush(a, vt):
    if not OPT["stamps"]:
        return
    a("s_waitcnt lgkmcnt(0)")
    if OPT.get("dbgstamp"):
        sk = a.new("L_nds")
        a("s_cmp_lg_u32 %s, 0", s(sW))
        a("s_cbranch_scc1 %s", sk)
        a("s_cmp_ge_u32 %s, 13", s(sCB))
        a("s_cbranch_scc1 %s", sk)
        a("s_cmp_ge_u32 %s, 10", s(sCB3))
        a("s_cbranch_scc1 %s", sk)
        srd(a, SDBG, pDBG, 256)
        a("s_not_b32 %s, %s", s(sST + 2), s(sST))
        a("v_mov_b32 %s, 0", v(vt + 1))
        for i in range(NST):
            a("v_writelane_b32 %s, %s, %d", v(vt + 1), s(sST + 2 * i), i)
        a("v_lshlrev_b32 %s, 2, v1", v(vt))
        a("s_mov_b64 exec, 0x3ff")
        a("buffer_atomic_umax %s, %s, %s, 0 offen sc1", v(vt + 1), v(vt), s(SDBG, 4))
        a.label(sk)
        return
    a("s_lshl_b32 %s, s2, 3", s(sT0))
    a("s_add_u32 %s, %s, %s", s(sT0), s(sT0), s(sW))
    a("s_lshl_b32 %s, %s, 6", s(sT0), s(sT0))
    a("s_add_u32 %s, %s, 0x%x", s(sT0), s(sT0), STAMP_OFF)
    a("v_mov_b32 %s, 0", v(vt))
    for i in range(NST):
        a("v_mov_b32 %s, %s", v(vt + 1), s(sST + 2 * i))
        a("buffer_store_dword %s, %s, %s, %s offen offset:%d", v(vt + 1), v(vt), s(SWS, 4), s(sT0), 4 * i)
        a("s_nop 1")


def wrap_add(a, reg, inc, lim):
    a("s_add_u32 %s, %s, 0x%x", s(reg), s(reg), inc)
    a("s_cmp_ge_u32 %s, 0x%x", s(reg), lim)
    a("s_cselect_b32 %s, 0, %s", s(reg), s(reg))


def dma(a, m0base, m0imm, voff, srdreg, soff, imm=0):
    a("s_add_u32 m0, %s, 0x%x", s(m0base), m0imm - imm)
    a("s_nop 0")
    o = " offset:%d" % imm if imm else ""
    a("buffer_load_dwordx4 %s, %s, %s offen%s lds", v(voff), s(srdreg, 4), s(soff), o)


def bf16_round(a, r):
    a("v_cvt_pk_bf16_f32 %s, %s, %s", v(r), v(r), v(r))
    a("v_and_b32 %s, 0xffff0000, %s", v(r), v(r))


def lane0_off(a, vT):
    a("v_cmp_eq_u32 vcc, 0, v1")
    a("v_mov_b32 %s, 0x%x", v(vT + 1), OOB)
    a("v_mov_b32 %s, 0", v(vT))
    a("v_cndmask_b32 %s, %s, %s, vcc", v(vT), v(vT + 1), v(vT))
    a("v_mov_b32 %s, 1", v(vT + 1))


def signal(a, vT):
    lane0_off(a, vT)
    a("s_lshr_b32 %s, s2, 3", s(sT2))
    a("s_lshl2_add_u32 %s, %s, 128", s(sT2), s(sT2))
    a("buffer_atomic_add %s, %s, %s, %s offen sc1", v(vT + 1), v(vT), s(SDBG, 4), s(sT2))


def set_flag(a, vT, soff):
    lane0_off(a, vT)
    a("s_waitcnt vmcnt(0)")
    a("buffer_store_dword %s, %s, %s, %s offen sc1", v(vT + 1), v(vT), s(SWS, 4), s(soff))


def spin(a, vF, vO, srdreg, soff, val, sleep, first_loaded=False):
    if OPT["noflag"]:
        return
    ok, lp, chk = a.new("L_sok"), a.new("L_ssp"), a.new("L_sck")
    a("s_mov_b32 %s, 0x40000", s(sSPIN))
    if first_loaded:
        a("s_branch %s", chk)
    a.label(lp)
    a("buffer_load_dword %s, %s, %s, %s offen sc1", v(vF), v(vO), s(srdreg, 4), soff)
    a("s_waitcnt vmcnt(0)")
    a.label(chk)
    a("v_cmp_gt_u32 vcc, %d, %s", val, v(vF))
    a("s_nop 1")
    a("s_cmp_eq_u64 vcc, 0")
    a("s_cbranch_scc1 %s", ok)
    a("s_sleep %d", sleep)
    a("s_sub_u32 %s, %s, 1", s(sSPIN), s(sSPIN))
    a("s_cbranch_scc0 %s", lp)
    a.label(ok)


class Loop:
    def __init__(self, cyc):
        self.ev = []
        self.cyc = cyc

    def rd(self, tag, text):
        self.ev.append(("rd", tag, text))

    def mfma(self, text, needs):
        self.ev.append(("mf", text, needs))

    def txt(self, text):
        self.ev.append(("txt", text))

    def barrier(self):
        self.ev.append(("bar",))

    def tail_reads(self):
        last = max(i for i, e in enumerate(self.ev) if e[0] == "bar")
        return [e for e in self.ev[last:] if e[0] == "rd"]

    def emit(self, a, last_iter=None):
        reads = []
        t = 0
        last = max(i for i, e in enumerate(self.ev) if e[0] == "bar")
        for e in self.ev[last:]:
            if e[0] == "rd":
                reads.append((e[1], t))
            elif e[0] == "mf":
                t += self.cyc
        conf = -1
        for n_, e in enumerate(self.ev):
            if last_iter and (e[0] == "txt" or (e[0] == "rd" and n_ > last)):
                continue
            if last_iter and e[0] == "bar":
                if n_ == last:
                    last_iter()
                    reads.append((("ARR",), t))
                continue
            if e[0] == "rd":
                a(e[2])
                reads.append((e[1], t))
            elif e[0] == "txt":
                a(e[1])
            elif e[0] == "bar":
                a("s_waitcnt lgkmcnt(0)")
                a("s_barrier")
                conf = len(reads) - 1
            else:
                need = -1
                for tag in e[2]:
                    idx = [i for i, r in enumerate(reads) if r[0] == tag]
                    if idx:
                        need = max(need, idx[-1])
                if need > conf:
                    old = [i for i, r in enumerate(reads) if r[1] <= t - OPT["thr"]]
                    if old:
                        need = max(need, old[-1])
                    n = len(reads) - 1 - need
                    if n > 15:
                        n = 15
                        need = len(reads) - 16
                    a("s_waitcnt lgkmcnt(%d)", n)
                    conf = need
                a(e[1])
                t += self.cyc


LvOA = [2, 3, 4, 5, 6, 7]
LvOB = [8, 9, 10, 11]
LvT, LvT2, LvT3, LvT4, LvF, LvO = 12, 13, 14, 15, 16, 17
LvSL, LvCO, LvCS, LvRO = 18, 19, 20, 21
LCS = 24
LAC = 56
LUP = 64
LXR = 84
PvWD = 23


def rowstats_issue(a):
    vT, vT2 = LvT, LvT2
    a("s_lshl_b32 %s, s2, 3", s(sT2))
    a("s_lshl1_add_u32 %s, %s, %s", s(sT2), s(sLW), s(sT2))
    a("v_lshrrev_b32 %s, 5, v1", v(LvRO))
    a("v_add_u32 %s, %s, %s", v(LvRO), s(sT2), v(LvRO))
    a("v_mul_u32_u24 %s, 1280, %s", v(vT), v(LvRO))
    a("v_and_b32 %s, 31, v1", v(vT2))
    a("v_lshl_add_u32 %s, %s, 3, %s", v(LvF), v(vT2), v(vT))
    a("v_lshl_add_u32 %s, %s, 4, %s", v(vT), v(vT2), v(vT))
    a("buffer_load_dwordx4 %s, %s, %s, 0 offen", v(LXR, 4), v(vT), s(SX, 4))
    a("buffer_load_dwordx4 %s, %s, %s, 0 offen offset:512", v(LXR + 4, 4), v(vT), s(SX, 4))
    a("buffer_load_dwordx2 %s, %s, %s, 0 offen offset:1024", v(LXR + 8, 2), v(LvF), s(SX, 4))
    a("v_cmp_gt_u32 vcc, 16, v1")
    a("v_lshlrev_b32 %s, 2, v1", v(vT))
    a("v_mov_b32 %s, 0x%x", v(vT2), OOB)
    a("v_cndmask_b32 %s, %s, %s, vcc", v(vT), v(vT2), v(vT))
    a("s_mul_i32 %s, s2, %d", s(sGO), FSTR)
    a("s_add_u32 %s, %s, 0x%x", s(sGO), s(sGO), FLG_OFF)
    a("s_lshl_b32 %s, %s, 6", s(sT2), s(sLW))
    a("s_add_u32 %s, %s, %s", s(sT2), s(sT2), s(sGO))
    a("v_mov_b32 %s, 0", v(vT2))
    a("buffer_store_dword %s, %s, %s, %s offen sc1", v(vT2), v(vT), s(SWS, 4), s(sT2))
    a("s_add_u32 %s, %s, 128", s(sGO), s(sGO))


def red32(a, r, t):
    for sh in (8, 4, 2, 1):
        a("s_nop 1")
        a("v_add_f32_dpp %s, %s, %s row_ror:%d row_mask:0xf bank_mask:0xf", v(r), v(r), v(r), sh)
    a("v_mov_b32 %s, %s", v(t), v(r))
    a("s_nop 1")
    a("v_permlane16_swap_b32 %s, %s", v(r), v(t))
    a("s_nop 0")
    a("v_add_f32 %s, %s, %s", v(r), v(r), v(t))


def rowstats_finish(a):
    UP, vSum, vSq, vT = LUP, LXR, LXR + 2, LvT
    for i in range(10):
        a("v_lshlrev_b32 %s, 16, %s", v(UP + 2 * i), v(LXR + i))
        a("v_and_b32 %s, 0xffff0000, %s", v(UP + 2 * i + 1), v(LXR + i))
    a("v_pk_add_f32 %s, %s, %s", v(vSum, 2), v(UP, 2), v(UP + 2, 2))
    a("v_pk_add_f32 %s, %s, %s", v(vSq, 2), v(UP + 4, 2), v(UP + 6, 2))
    for i in range(4, 10, 2):
        a("v_pk_add_f32 %s, %s, %s", v(vSum, 2), v(vSum, 2), v(UP + 2 * i, 2))
        a("v_pk_add_f32 %s, %s, %s", v(vSq, 2), v(vSq, 2), v(UP + 2 * i + 2, 2))
    a("v_pk_add_f32 %s, %s, %s", v(vSum, 2), v(vSum, 2), v(vSq, 2))
    a("v_add_f32 %s, %s, %s", v(vSum), v(vSum), v(vSum + 1))
    red32(a, vSum, vT)
    a("v_mul_f32 %s, 0x%x, %s", v(vSum), f2u(-1.0 / 640), v(vSum))
    for i in range(10):
        a("v_pk_add_f32 %s, %s, %s op_sel_hi:[1,0]", v(UP + 2 * i, 2), v(UP + 2 * i, 2), v(vSum, 2))
    a("v_pk_mul_f32 %s, %s, %s", v(vSq, 2), v(UP, 2), v(UP, 2))
    a("v_pk_mul_f32 %s, %s, %s", v(vSq + 2, 2), v(UP + 2, 2), v(UP + 2, 2))
    for i in range(2, 10, 2):
        a("v_pk_fma_f32 %s, %s, %s, %s", v(vSq, 2), v(UP + 2 * i, 2), v(UP + 2 * i, 2), v(vSq, 2))
        a("v_pk_fma_f32 %s, %s, %s, %s", v(vSq + 2, 2), v(UP + 2 * i + 2, 2), v(UP + 2 * i + 2, 2), v(vSq + 2, 2))
    a("v_pk_add_f32 %s, %s, %s", v(vSq, 2), v(vSq, 2), v(vSq + 2, 2))
    a("v_add_f32 %s, %s, %s", v(vSq), v(vSq), v(vSq + 1))
    red32(a, vSq, vT)
    a("v_mul_f32 %s, 0x%x, %s", v(vSq), f2u(1.0 / 640), v(vSq))
    bf16_round(a, vSq)
    a("v_add_f32 %s, 0x%x, %s", v(vSq), f2u(1e-5), v(vSq))
    bf16_round(a, vSq)
    a("v_sqrt_f32 %s, %s", v(vSq), v(vSq))
    a("v_lshlrev_b32 %s, 3, %s", v(LvRO), v(LvRO))
    bf16_round(a, vSq)
    a("v_rcp_f32 %s, %s", v(vSum + 1), v(vSq))
    bf16_round(a, vSum)
    a("v_and_b32 %s, 31, v1", v(vT))
    a("v_cmp_eq_u32 vcc, 0, %s", v(vT))
    a("v_mov_b32 %s, 0x%x", v(vT), OOB)
    a("s_mov_b32 %s, 0x%x", s(sT2), STATS_OFF)
    a("v_cndmask_b32 %s, %s, %s, vcc", v(LvRO), v(vT), v(LvRO))
    a("buffer_store_dwordx2 %s, %s, %s, %s offen sc1", v(vSum, 2), v(LvRO), s(SWS, 4), s(sT2))


def rot_calc(a, stride):
    r = OPT["rot"]
    if r == 0:
        a("s_mov_b32 %s, 0", s(sT0))
    elif r == 1:
        a("s_mul_i32 %s, %s, 3", s(sT0), s(sCB))
        a("s_add_u32 %s, %s, %s", s(sT0), s(sT0), s(sRB))
        a("s_mul_i32 %s, %s, 6554", s(sT1), s(sT0))
        a("s_lshr_b32 %s, %s, 16", s(sT1), s(sT1))
        a("s_mul_i32 %s, %s, 10", s(sT1), s(sT1))
        a("s_sub_u32 %s, %s, %s", s(sT0), s(sT0), s(sT1))
    else:
        a("s_add_u32 %s, %s, %s", s(sT0), s(sCB), s(sRB))
        a("s_mul_i32 %s, %s, %d", s(sT1), s(sT0), 65536 // r + 1)
        a("s_lshr_b32 %s, %s, 16", s(sT1), s(sT1))
        a("s_mul_i32 %s, %s, %d", s(sT1), s(sT1), r)
        a("s_sub_u32 %s, %s, %s", s(sT0), s(sT0), s(sT1))
        a("s_mul_i32 %s, %s, 10", s(sT0), s(sT0))
        a("s_mul_i32 %s, %s, %d", s(sT0), s(sT0), 65536 // r + 1)
        a("s_lshr_b32 %s, %s, 16", s(sT0), s(sT0))
    a("s_lshl_b32 %s, %s, 7", s(sKA), s(sT0))
    a("s_mul_i32 %s, %s, %d", s(sKB), s(sT0), 64 * stride)
    a("s_mov_b32 %s, %d", s(sINCB), 32 * stride)
    a("s_mov_b32 %s, %d", s(sLIMB), 640 * stride)
    a("s_mov_b32 %s, %d", s(sSTR), 8 * stride)


def ffn_loader_setup(a):
    a.c("---------------- FFN loader setup")
    vT, vT2, vT3, vT4 = LvT, LvT2, LvT3, LvT4
    a("v_lshrrev_b32 %s, 3, v1", v(vT))
    a("v_and_b32 %s, 7, v1", v(vT3))
    a("s_mul_i32 %s, %s, 48", s(sT0), s(sLW))
    a("s_add_u32 %s, %s, %s", s(sT0), s(sT0), s(sROW0))
    a("v_add_u32 %s, %s, %s", v(vT2), s(sT0), v(vT))
    a("v_mul_u32_u24 %s, 1280, %s", v(vT2), v(vT2))
    a("v_lshrrev_b32 %s, 4, v1", v(vT4))
    a("v_xor_b32 %s, %s, %s", v(vT4), v(vT4), v(vT3))
    a("v_lshl_add_u32 %s, %s, 4, %s", v(LvOA[0]), v(vT4), v(vT2))
    a("v_xor_b32 %s, 4, %s", v(vT4), v(vT4))
    a("v_lshl_add_u32 %s, %s, 4, %s", v(LvOA[1]), v(vT4), v(vT2))
    a("v_add_u32 %s, %d, %s", v(LvOA[1]), 8 * 1280, v(LvOA[1]))
    for ii in range(2, 6):
        a("v_add_u32 %s, %d, %s", v(LvOA[ii]), 16 * 1280 * (ii >> 1), v(LvOA[ii & 1]))
    rot_calc(a, 3456)
    a("s_mul_i32 %s, %s, 6144", s(sMA), s(sLW))
    a("s_waitcnt lgkmcnt(0)")
    srd(a, SX, pX, S * D * 2)
    for ii in range(6):
        dma(a, sMA, ii * 1024, LvOA[ii], SX, sKA)
    a("s_lshl_b32 %s, %s, 3", s(sT0), s(sLW))
    a("v_add_u32 %s, %s, %s", v(vT2), s(sT0), v(vT))
    a("v_mul_u32_u24 %s, 3456, %s", v(vT2), v(vT2))
    a("v_bfe_u32 %s, v1, 4, 1", v(vT4))
    a("v_lshlrev_b32 %s, 2, %s", v(vT4), v(vT4))
    a("v_xor_b32 %s, %s, %s", v(vT4), v(vT4), v(vT3))
    a("v_lshl_add_u32 %s, %s, 4, %s", v(vT2), v(vT4), v(vT2))
    a("s_lshl_b32 %s, %s, 8", s(sT0), s(sCB))
    a("v_add_u32 %s, %s, %s", v(LvOB[0]), s(sT0), v(vT2))
    a("s_cmp_eq_u32 %s, 13", s(sCB))
    a("s_movk_i32 %s, 128", s(sT1))
    a("s_cselect_b32 %s, 0x%x, %s", s(sT1), OOB, s(sT1))
    a("v_add_u32 %s, %s, %s", v(LvOB[1]), s(sT1), v(LvOB[0]))
    a("v_mov_b32 %s, %s", v(LvOB[2]), v(LvOB[0]))
    a("v_mov_b32 %s, %s", v(LvOB[3]), v(LvOB[1]))
    srd(a, SB0, pG, D * F * 2)
    srd(a, SB1, pU, D * F * 2)
    a("s_branch L_loader")


def qkv_loader_setup(a):
    a.c("---------------- QKV loader setup")
    vT, vT2, vT3, vT4 = LvT, LvT2, LvT3, LvT4
    a("v_lshrrev_b32 %s, 4, v1", v(vT))
    a("v_mul_u32_u24 %s, 6, %s", v(vT2), v(vT))
    a("v_bfe_u32 %s, v1, 3, 1", v(vT3))
    a("s_mul_i32 %s, %s, 48", s(sT0), s(sLW))
    a("s_add_u32 %s, %s, %s", s(sT0), s(sT0), s(sROW0))
    a("v_add3_u32 %s, %s, %s, %s", v(vT2), v(vT2), v(vT3), s(sT0))
    a("v_mul_u32_u24 %s, 1280, %s", v(vT2), v(vT2))
    a("v_and_b32 %s, 7, v1", v(vT3))
    a("v_xor_b32 %s, %s, %s", v(vT3), v(vT3), v(vT))
    a("v_xor_b32 %s, 4, %s", v(vT4), v(vT3))
    a("v_lshl_add_u32 %s, %s, 4, %s", v(vT3), v(vT3), v(vT2))
    a("v_lshl_add_u32 %s, %s, 4, %s", v(vT4), v(vT4), v(vT2))
    for ii in range(6):
        t_, par = ii >> 1, ii & 1
        a("v_add_u32 %s, %d, %s", v(LvOA[ii]), (24 * par + 2 * t_) * 1280, v(vT4 if par else vT3))
    rot_calc(a, 3840)
    a("s_mul_i32 %s, %s, 6144", s(sMA), s(sLW))
    a("s_waitcnt lgkmcnt(0)")
    srd(a, SX, pX, S * D * 2)
    for ii in range(6):
        dma(a, sMA, ii * 1024, LvOA[ii], SX, sKA)
    a("s_lshl_b32 %s, %s, 6", s(sT0), s(sLW))
    a("s_mul_i32 %s, %s, 160", s(sT2), s(sCB))
    for ii in range(4):
        q = LvOB[ii]
        if ii == 0:
            a("v_add_u32 %s, %s, v1", v(LvF), s(sT0))
        else:
            a("v_add_u32 %s, 0x100, %s", v(LvF), v(LvF))
        a("v_mul_u32_u24 %s, 2185, %s", v(vT), v(LvF))
        a("v_lshrrev_b32 %s, 16, %s", v(vT), v(vT))
        a("v_mul_u32_u24 %s, 30, %s", v(vT2), v(vT))
        a("v_sub_u32 %s, %s, %s", v(vT2), v(LvF), v(vT2))
        a("v_mul_u32_u24 %s, 26, %s", v(vT3), v(vT2))
        a("v_lshrrev_b32 %s, 8, %s", v(vT3), v(vT3))
        a("v_mul_u32_u24 %s, %d, %s", v(vT3), 1280 - 160, v(vT3))
        a("v_lshl_add_u32 %s, %s, 4, %s", v(vT3), v(vT2), v(vT3))
        a("v_and_b32 %s, 12, %s", v(vT2), v(vT))
        a("v_add_u32 %s, %s, %s", v(vT2), v(vT2), v(vT))
        a("v_lshrrev_b32 %s, 4, %s", v(vT4), v(vT))
        a("v_mul_u32_u24 %s, 12, %s", v(vT4), v(vT4))
        a("v_sub_u32 %s, %s, %s", v(vT2), v(vT2), v(vT4))
        a("v_mul_u32_u24 %s, 3840, %s", v(vT2), v(vT2))
        a("v_add3_u32 %s, %s, %s, %s", v(q), v(vT2), v(vT3), s(sT2))
    a("s_cmp_eq_u32 %s, 3", s(sLW))
    a("s_cselect_b32 %s, 0x%x, 0", s(sT0), OOB)
    a("v_or_b32 %s, %s, %s", v(LvOB[3]), s(sT0), v(LvOB[3]))
    srd(a, SB0, pQ, D * 1920 * 2)
    srd(a, SB1, pQ, D * 1920 * 2)


def ffn_setup2(a):
    vT, vT3 = LvT, LvT3
    a("s_cmp_lt_u32 %s, 2", s(sLW))
    a("s_cselect_b64 %s, %s, %s", s(SCS, 2), s(SB0, 2), s(SB1, 2))
    a("s_cselect_b32 %s, 0, %d", s(sCSD), 1728 * 4)
    a("s_cselect_b32 %s, 0, %d", s(sCOL0), 1600 * 4)
    a("s_mov_b32 %s, %d", s(SCS + 2), 640 * 3456)
    a("s_and_b32 %s, %s, 1", s(sT0), s(sLW))
    a("s_lshl1_add_u32 %s, %s, %s", s(sT0), s(sCB), s(sT0))
    a("v_lshrrev_b32 %s, 3, v1", v(vT))
    a("v_mul_u32_u24 %s, 3456, %s", v(vT), v(vT))
    a("s_mul_i32 %s, %s, %d", s(sCSO), s(sRB), 64 * 3456)
    a("s_add_u32 %s, %s, %d", s(sCSD), s(sCSD), 1920 * 4)
    a("s_cmp_lt_u32 %s, 27", s(sT0))
    a("s_cselect_b32 %s, 10, 0", s(sT2))
    a("s_lshl_b32 %s, %s, 6", s(sT1), s(sLW))
    a("v_add_u32 %s, %s, v1", v(LvCO), s(sT1))
    a("v_lshlrev_b32 %s, 2, %s", v(LvCO), v(LvCO))
    a("s_lshl_b32 %s, %s, 9", s(sT1), s(sCB))
    a("s_add_u32 %s, %s, %s", s(sCOL0), s(sCOL0), s(sT1))
    a("s_add_u32 %s, %s, 0x%x", s(sCOL0), s(sCOL0), COLS_OFF + 1920 * 4)


def qkv_setup2(a):
    vT, vT3 = LvT, LvT3
    a("s_mov_b64 %s, %s", s(SCS, 2), s(SB0, 2))
    a("s_mov_b32 %s, %d", s(SCS + 2), 640 * 3840)
    a("s_mov_b32 %s, 0", s(sCSD))
    a("s_mul_i32 %s, %s, 10", s(sT0), s(sLW))
    a("s_add_u32 %s, %s, %s", s(sT0), s(sT0), s(sCB))
    a("s_lshr_b32 %s, %s, 2", s(sT1), s(sCB))
    a("s_add_u32 %s, %s, %s", s(sT0), s(sT0), s(sT1))
    a("s_mul_i32 %s, %s, 10", s(sT1), s(sCB))
    a("s_add_u32 %s, %s, 4", s(sT1), s(sT1))
    a("s_cmp_ge_u32 %s, 3", s(sCB))
    a("s_cselect_b32 %s, 25, 0", s(sT2))
    a("s_sub_u32 %s, %s, %s", s(sT1), s(sT1), s(sT2))
    a("s_cmp_lt_u32 %s, 6", s(sCB))
    a("s_cselect_b32 %s, 10, 0", s(sT2))
    a("s_cmp_lt_u32 %s, 3", s(sLW))
    a("s_cselect_b32 %s, %s, %s", s(sT0), s(sT0), s(sT1))
    a("s_cselect_b32 %s, 10, %s", s(sT2), s(sT2))
    a("v_lshrrev_b32 %s, 3, v1", v(vT))
    a("v_mul_u32_u24 %s, 3840, %s", v(vT), v(vT))
    a("s_mul_i32 %s, %s, %d", s(sCSO), s(sRB), 64 * 3840)
    a("s_lshl_b32 %s, %s, 6", s(sT1), s(sLW))
    a("v_add_u32 %s, %s, v1", v(LvCO), s(sT1))
    a("v_mul_u32_u24 %s, 820, %s", v(vT3), v(LvCO))
    a("v_lshrrev_b32 %s, 16, %s", v(vT3), v(vT3))
    a("v_mul_u32_u24 %s, 560, %s", v(vT3), v(vT3))
    a("v_add_lshl_u32 %s, %s, %s, 2", v(LvCO), v(LvCO), v(vT3))
    a("s_mul_i32 %s, %s, 320", s(sCOL0), s(sCB))
    a("s_add_u32 %s, %s, 0x%x", s(sCOL0), s(sCOL0), COLS_OFF)


def swz_chunk(a, vD, vT):
    a("v_bfe_u32 %s, v1, 4, 1", v(vD))
    a("v_lshlrev_b32 %s, 2, %s", v(vD), v(vD))
    a("v_and_b32 %s, 7, v1", v(vT))
    a("v_xor_b32 %s, %s, %s", v(vD), v(vD), v(vT))
    a("v_lshlrev_b32 %s, 4, %s", v(vD), v(vD))


def tr_lane(a, vD, vT, hfmul):
    a("v_lshrrev_b32 %s, 5, v1", v(vT))
    a("v_bfe_u32 %s, v1, 2, 2", v(vD))
    a("v_lshl_add_u32 %s, %s, %d, %s", v(vD), v(vT), {4: 2, 8: 3}[hfmul], v(vD))
    a("v_lshlrev_b32 %s, 7, %s", v(vD), v(vD))
    a("v_bfe_u32 %s, v1, 3, 1", v(vT))
    a("v_lshl_add_u32 %s, %s, 6, %s", v(vD), v(vT), v(vD))
    a("v_bfe_u32 %s, v1, 4, 1", v(vT))
    a("v_lshl_add_u32 %s, %s, 5, %s", v(vD), v(vT), v(vD))
    a("v_and_b32 %s, 3, v1", v(vT))
    a("v_lshl_add_u32 %s, %s, 3, %s", v(vD), v(vT), v(vD))


def p3_rot(a):
    if OPT["k2rot"] == 2:
        a("s_lshl1_add_u32 %s, %s, %s", s(sT0), s(sCB3), s(sR0))
        a("s_mul_i32 %s, %s, 57", s(sRW), s(sT0))
        a("s_lshr_b32 %s, %s, 9", s(sRW), s(sRW))
        a("s_mul_i32 %s, %s, 9", s(sRW), s(sRW))
        a("s_sub_u32 %s, %s, %s", s(sT0), s(sT0), s(sRW))
    elif OPT["k2rot"]:
        a("s_cmp_ge_u32 %s, 9", s(sCB3))
        a("s_cselect_b32 %s, 4, %s", s(sT0), s(sCB3))
    else:
        a("s_mov_b32 %s, 0", s(sT0))
    a("s_mul_i32 %s, %s, %d", s(sRW), s(sT0), 96 * 1280)
    a("s_mul_i32 %s, %s, 6144", s(sRX), s(sT0))


PvN, PvS, PvN2 = 20, 21, 22


def pre_setup(a):
    t2, t3 = LvT, LvT2
    srd(a, SW3, pWD, F * D * 2)
    srd(a, SWO, pWO, D * D * 2)
    swz_chunk(a, t3, t2)
    a("s_lshl_b32 %s, %s, 7", s(sT0), s(sCB3))
    a("v_add_u32 %s, %s, %s", v(t3), s(sT0), v(t3))
    a("v_lshrrev_b32 %s, 3, v1", v(t2))
    a("v_mul_u32_u24 %s, 1280, %s", v(t2), v(t2))
    a("v_add_u32 %s, %s, %s", v(PvN), v(t2), v(t3))
    a("s_mul_i32 %s, %s, %d", s(sT0), s(sLW), 24 * 1280)
    a("v_add_u32 %s, %s, %s", v(PvWD), s(sT0), v(PvN))
    a("v_lshrrev_b32 %s, 5, v1", v(t2))
    a("v_mul_u32_u24 %s, 20, %s", v(t2), v(t2))
    a("v_bfe_u32 %s, v1, 3, 2", v(PvS))
    a("v_add3_u32 %s, %s, %s, 16", v(t2), v(t2), v(PvS))
    a("v_mul_u32_u24 %s, 1280, %s", v(t2), v(t2))
    a("v_add_u32 %s, %s, %s", v(PvS), v(t2), v(t3))
    p3_rot(a)
    a("s_mul_i32 %s, %s, 3072", s(sLD), s(sLW))
    a("s_and_b32 %s, %s, 1", s(sKH), s(sLW))
    a("s_lshr_b32 %s, %s, 1", s(sPAR), s(sLW))
    a("s_mul_i32 %s, %s, %d", s(sT0), s(sKH), 320 * 1280)
    a("s_mul_i32 %s, %s, %d", s(sT2), s(sPAR), 160 * 1280)
    a("s_add_u32 %s, %s, %s", s(sT0), s(sT0), s(sT2))
    a("s_mul_i32 %s, %s, %d", s(sT1), s(sKH), 864 * 1280)
    a("s_mul_i32 %s, %s, %d", s(sT2), s(sPAR), 48 * 1280)
    a("s_add_u32 %s, %s, %s", s(sT1), s(sT1), s(sT2))
    a("s_cmp_ge_u32 %s, 10", s(sCB3))
    a("s_cselect_b32 %s, 0x%x, %s", s(sT0), OOB, s(sT0))
    a("s_cselect_b32 %s, 0x%x, %s", s(sT1), OOB, s(sT1))
    a("v_add_u32 %s, %s, %s", v(PvN2), s(sT0), v(PvN))
    a("v_add_u32 %s, %s, %s", v(PvS), s(sT0), v(PvS))
    a("v_add_u32 %s, %s, %s", v(PvN), s(sT1), v(PvN))


def chunk_off(a, c, base=None):
    a("s_add_u32 %s, %s, %d", s(sT2), s(sRW if base is None else base), c * 96 * 1280)
    a("s_cmp_ge_u32 %s, %d", s(sT2), 864 * 1280)
    a("s_cselect_b32 %s, %d, 0", s(sT3), 864 * 1280)
    a("s_sub_u32 %s, %s, %s", s(sT2), s(sT2), s(sT3))


def down_chunk(a, kh, c, issued=None):
    chunk_off(a, c)
    for ii in range(3):
        a("s_add_u32 %s, %s, %d", s(sT0), s(sT2), (864 * kh + 8 * ii) * 1280)
        dma(a, sLD, kh * D_KH + c * 12288 + ii * 1024, PvWD, SW3, sT0)
        if issued is not None:
            issued.append(("W3", 0))


STGQ, STGH, STGO = 32, 104, 176


def stage_h(a, c0, dst, cs=(0, 1, 2)):
    for c in cs:
        chunk_off(a, c0 + c)
        for i in range(6):
            a("buffer_load_dwordx4 %s, %s, %s, %s offen", v(dst + (6 * c + i) * 4, 4), v(PvN), s(SW3, 4), s(sT2))
            if i < 5:
                a("s_add_u32 %s, %s, %d", s(sT2), s(sT2), 8 * 1280)


def stage_o(a):
    for k in range(20):
        hg, i = k // 10, k % 10
        row = 80 * hg + (20 * (i >> 1) + 8 * (i & 1) if i < 8 else 40 * (i - 8))
        a("s_mov_b32 %s, %d", s(sT0), row * 1280)
        a("buffer_load_dwordx4 %s, %s, %s, %s offen", v(STGO + k * 4, 4), v(PvS if i >= 8 else PvN2), s(SWO, 4), s(sT0))


def lds_free_after(kh, c):
    lo = kh * D_KH + c * 12288
    hi = lo + 12288
    spans = [(0, 24576, 20), (24576, 49152, 16), (49152, 73728, 18),
             (73728, 90112, 17), (90112, 106496, 18), (106496, 122880, 19), (122880, 139264, 20)]
    return max([16] + [b for x, y, b in spans if lo < y and hi > x])


def lds_arrive(a, vA_, vD, word):
    a("v_mov_b32 %s, 0x%x", v(vA_), LCNT + 4 * word)
    a("v_mov_b32 %s, 1", v(vD))
    a("s_mov_b64 exec, 1")
    a("ds_add_u32 %s, %s", v(vA_), v(vD))
    a("s_mov_b64 exec, -1")


def lds_wait(a, vA_, vD, sleep=0):
    lp, ex = a.new("L_lw"), a.new("L_lx")
    a("s_mov_b32 s100, 0x400000")
    a.label(lp)
    if sleep:
        a("s_sleep %d", sleep)
    a("ds_read_b32 %s, %s", v(vD), v(vA_))
    a("s_sub_u32 s100, s100, 1")
    a("s_cbranch_scc1 %s", ex)
    a("s_waitcnt lgkmcnt(0)")
    a("v_readfirstlane_b32 %s, %s", s(sSPIN), v(vD))
    a("s_nop 1")
    a("s_cmp_lt_u32 %s, 4", s(sSPIN))
    a("s_cbranch_scc1 %s", lp)
    a.label(ex)


def hflag_addr(a, vFl, vFo, nr1):
    a("v_lshrrev_b32 %s, 5, v1", v(vFl))
    a("v_mul_u32_u24 %s, %d, %s", v(vFl), nr1, v(vFl))
    a("v_add_u32 %s, %s, %s", v(vFl), s(sR0), v(vFl))
    a("v_mul_u32_u24 %s, 43, %s", v(vFl), v(vFl))
    a("v_lshrrev_b32 %s, 8, %s", v(vFl), v(vFl))
    a("v_mul_u32_u24 %s, %d, %s", v(vFl), FSTR, v(vFl))
    a("v_and_b32 %s, 31, v1", v(vFo))
    a("v_min_u32 %s, 13, %s", v(vFo), v(vFo))
    a("v_lshl_add_u32 %s, %s, 2, %s", v(vFo), v(vFo), v(vFl))


def loader(a):
    a.label("L_loader")
    a.c("---------------- common loader")
    vT, vT2, vT3 = LvT, LvT2, LvT3
    a("s_lshl_b32 %s, %s, 10", s(sMB), s(sLW))
    issued = [("A", 0)] * 6

    def issueA(step, half):
        slot = step % 3
        for ii in range(3 * half, 3 * half + 3):
            dma(a, sMA, slot * A_SLOT + ii * 1024, LvOA[ii], SX, sKA)
            issued.append(("A", step))
        if half == 1:
            wrap_add(a, sKA, 128, 1280)

    def issueB(h):
        slot = h % 4
        for ii in range(4):
            dma(a, sMB, B_BASE + slot * B_SLOT + ii * 4096, LvOB[ii], SB0 if ii < 2 else SB1, sKB)
            issued.append(("B", h))
        a("s_add_u32 %s, %s, %s", s(sKB), s(sKB), s(sINCB))
        a("s_cmp_ge_u32 %s, %s", s(sKB), s(sLIMB))
        a("s_cselect_b32 %s, 0, %s", s(sKB), s(sKB))

    def wait_for(lst, *tags):
        real = [x for x in lst if x != ("F", 0)]
        last = max(i for i, x in enumerate(real) if x in tags)
        a("s_waitcnt vmcnt(%d)", min(63, len(real) - 1 - last))

    def setup2():
        lq, ld = a.new("L_s2q"), a.new("L_s2d")
        srd(a, SWS, pWS, WS_BYTES)
        rowstats_issue(a)
        issued.extend([("RS", 0)] * 3 + [("RST", 0)])
        a("s_cmp_eq_u32 %s, 1", s(sROLE))
        a("s_cbranch_scc1 %s", lq)
        ffn_setup2(a)
        a("s_branch %s", ld)
        a.label(lq)
        qkv_setup2(a)
        a.label(ld)
        a("s_mov_b32 %s, 0x20000", s(SCS + 3))
        a("v_and_b32 %s, 7, v1", v(vT3))
        a("v_lshl_add_u32 %s, %s, 4, %s", v(vT), v(vT3), v(vT))
        a("s_lshl_b32 %s, %s, 7", s(sT1), s(sT0))
        a("s_cmp_lt_u32 %s, %s", s(sRB), s(sT2))
        a("s_cselect_b32 %s, %s, 0x%x", s(sT1), s(sT1), OOB)
        a("v_add_u32 %s, %s, %s", v(LvCS), s(sT1), v(vT))
        a("s_lshl_b32 %s, %s, 8", s(sT0), s(sT0))
        a("s_add_u32 %s, %s, %s", s(sCSD), s(sCSD), s(sT0))
        a("s_mul_i32 %s, %s, %d", s(sT0), s(sRB), 5376 * 4)
        a("s_add_u32 %s, %s, %s", s(sCSD), s(sCSD), s(sT0))
        a("s_add_u32 %s, %s, 0x%x", s(sCSD), s(sCSD), COLS_OFF)
        a("s_cmp_lt_u32 %s, %s", s(sRB), s(sT2))
        a("s_cselect_b32 %s, %s, 0x%x", s(sCSD), s(sCSD), OOB)
        a("v_mov_b32 %s, 0", v(LvO))

    def cs_issue():
        for i in range(8):
            a("buffer_load_dwordx4 %s, %s, %s, %s offen", v(LCS + 4 * i, 4), v(LvCS), s(SCS, 4), s(sCSO))
            issued.append(("CS", 0))
            if i < 7:
                a("s_add_u32 %s, %s, %s", s(sCSO), s(sCSO), s(sSTR))

    def cs_reduce(part):
        if part == 0:
            wait_for(issued, ("CS", 0))
        for i in range(5 * part, 5 + 3 * part):
            dst = LAC if i == 0 else LUP
            for j in range(4):
                a("v_lshlrev_b32 %s, 16, %s", v(dst + 2 * j), v(LCS + 4 * i + j))
                a("v_and_b32 %s, 0xffff0000, %s", v(dst + 2 * j + 1), v(LCS + 4 * i + j))
            if i:
                for j in range(4):
                    a("v_pk_add_f32 %s, %s, %s", v(LAC + 2 * j, 2), v(LAC + 2 * j, 2), v(LUP + 2 * j, 2))
        if part == 0:
            return
        a("s_nop 1")
        for j in range(4):
            a("v_permlane32_swap_b32 %s, %s", v(LAC + j), v(LAC + 4 + j))
        a("s_nop 0")
        for j in range(0, 4, 2):
            a("v_pk_add_f32 %s, %s, %s", v(LAC + j, 2), v(LAC + j, 2), v(LAC + 4 + j, 2))
        a("s_nop 1")
        for j in range(2):
            a("v_permlane16_swap_b32 %s, %s", v(LAC + j), v(LAC + 2 + j))
        a("s_nop 0")
        a("v_pk_add_f32 %s, %s, %s", v(LAC, 2), v(LAC, 2), v(LAC + 2, 2))
        a("v_and_b32 %s, 7, v1", v(vT))
        a("v_lshlrev_b32 %s, 5, %s", v(vT), v(vT))
        a("v_lshrrev_b32 %s, 4, v1", v(vT2))
        a("v_lshl_add_u32 %s, %s, 3, %s", v(vT), v(vT2), v(vT))
        for j in range(2):
            a("v_add_f32_dpp %s, %s, %s row_ror:8 row_mask:0xf bank_mask:0xf", v(LAC + j), v(LAC + j), v(LAC + j))
        a("buffer_store_dwordx2 %s, %s, %s, %s offen sc1", v(LAC, 2), v(vT), s(SWS, 4), s(sCSD))
        issued.append(("CST", 0))

    def poll():
        sk = a.new("L_np")
        a("s_cmp_lg_u32 %s, 0", s(sLW))
        a("s_cbranch_scc1 %s", sk)
        a("buffer_load_dword %s, %s, %s, %s offen sc1", v(LvF), v(LvO), s(SWS, 4), s(sGO))
        a.label(sk)
        issued.append(("F", 0))

    def check(lst):
        n = len(lst) - 1 - lst.index(("F", 0))
        ok = a.new("L_fok")
        a("s_cmp_lg_u32 %s, 0", s(sLW))
        a("s_cbranch_scc1 %s", ok)
        a("s_waitcnt vmcnt(%d)", n)
        spin(a, LvF, LvO, SWS, s(sGO), 1, 2, True)
        a.label(ok)

    def stats_issue(lst):
        a("s_mov_b32 %s, %s", s(sT0), s(sCOL0))
        for k in range(10):
            a("buffer_load_dword %s, %s, %s, %s offen sc1", v(26 + k), v(LvCO), s(SWS, 4), s(sT0))
            if k < 9:
                a("s_add_u32 %s, %s, %d", s(sT0), s(sT0), 5376 * 4)
        a("s_lshl_b32 %s, %s, 6", s(sT0), s(sLW))
        a("v_add_u32 %s, %s, v1", v(vT), s(sT0))
        a("v_lshlrev_b32 %s, 3, %s", v(LvSL), v(vT))
        a("s_lshl_b32 %s, %s, 3", s(sT0), s(sROW0))
        a("s_add_u32 %s, %s, 0x%x", s(sT0), s(sT0), STATS_OFF)
        a("buffer_load_dwordx2 %s, %s, %s, %s offen sc1", v(24, 2), v(LvSL), s(SWS, 4), s(sT0))
        lst.extend([("ST", 0)] * 11)

    def stats_write(lst):
        wait_for(lst, ("ST", 0))
        for k in (2, 4, 6, 8):
            a("v_pk_add_f32 v[26:27], v[26:27], %s", v(26 + k, 2))
        a("v_add_u32 %s, 0x%x, %s", v(vT), STAT, v(LvSL))
        a("v_lshrrev_b32 %s, 1, %s", v(vT2), v(LvSL))
        a("v_add_f32 v26, v26, v27")
        a("v_add_u32 %s, 0x%x, %s", v(vT2), STAT + 2048, v(vT2))
        a("ds_write_b64 %s, %s", v(vT), v(24, 2))
        a("ds_write_b32 %s, v26", v(vT2))
        a("ds_write_b32 %s, %s offset:1024", v(vT2), v(LvO))

    def pf_w2():
        a("s_lshl2_add_u32 %s, s2, %s", s(sT0), s(sLW))
        a("s_sub_u32 %s, %s, 384", s(sT0), s(sT0))
        a("s_cmp_lt_u32 %s, 270", s(sT0))
        a("s_cselect_b64 %s, %s, %s", s(SCS, 2), s(pWD, 2), s(pWO, 2))
        a("s_cselect_b32 %s, 0x%x, 0", s(SCS + 2), F * D * 2 - D * D * 2)
        a("s_cselect_b32 %s, 0, 270", s(sT2))
        a("s_add_u32 %s, %s, 0x%x", s(SCS + 2), s(SCS + 2), D * D * 2)
        a("s_and_b32 %s, %s, 0xffff", s(SCS + 1), s(SCS + 1))
        a("s_sub_u32 %s, %s, %s", s(sT0), s(sT0), s(sT2))
        a("s_min_u32 %s, %s, 1000", s(sT0), s(sT0))
        a("s_lshl_b32 %s, %s, 13", s(sT0), s(sT0))
        a("v_lshlrev_b32 %s, 7, v1", v(vT3))
        a("buffer_load_dword v0, %s, %s, %s offen", v(vT3), s(SCS, 4), s(sT0))
        issued.append(("PF", 0))

    csh = OPT["cs_h"]
    issueB(0); issueB(1)
    wrap_add(a, sKA, 128, 1280)
    setup2()
    if csh < 0:
        cs_issue()
    for h in range(17):
        need = [("B", h), ("A", h >> 1)]
        if h == csh + 7:
            need.append(("CST", 0))
        wait_for(issued, *need)
        a("s_barrier")
        if h == 0:
            stamp(a, 1)
            issueA(1, 0); issueA(1, 1); issueB(2); issueB(3)
        elif h == 1:
            issueB(4); issueA(2, 0); issueA(2, 1)
        else:
            issueB(h + 3)
            if (h >> 1) + 2 <= 9:
                issueA((h >> 1) + 2, h & 1)
        if h == csh:
            cs_issue()
        if h == (2 if csh != -1 else 4):
            wait_for(issued, ("RS", 0))
            rowstats_finish(a)
            issued.append(("CST", 0))
        if h == csh + 3:
            cs_reduce(0)
        if h == csh + 4:
            cs_reduce(1)
        if OPT["pfw2"] and h == OPT["pfw2_h"]:
            pf_w2()
        if h == 12:
            poll()
        if h == 13:
            pre_setup(a)
        if h == 14:
            stamp(a, 2)
            check(issued)
            stamp(a, 3)
        if h == 15:
            stats_issue(issued)
    allc = [(kh, c) for c in range(6) for kh in range(2)]
    a("s_cmp_eq_u32 %s, 1", s(sROLE))
    a("s_cbranch_scc1 L_qkv_ltail")
    lst = list(issued)
    for kh, c in allc:
        if lds_free_after(kh, c) == 16:
            down_chunk(a, kh, c, lst)
    wait_for(lst, ("B", 17))
    a("s_barrier")
    stats_write(lst)
    wait_for(lst, ("B", 19))
    a("s_waitcnt lgkmcnt(0)")
    a("s_barrier")
    stamp(a, 4)
    for kh, c in allc:
        if lds_free_after(kh, c) in (17, 18):
            down_chunk(a, kh, c)
    stage_h(a, 6, STGH)
    a("v_mov_b32 v2, 0x%x", LCNT + 16)
    lds_wait(a, 2, 3, 1)
    for kh, c in allc:
        if lds_free_after(kh, c) >= 19:
            down_chunk(a, kh, c)
    a.label("L_lnext")
    stage_o(a)
    a("s_branch L_aux")
    a.label("L_spare_lnext")
    pre_setup(a)
    stage_h(a, 6, STGH)
    for kh, c in allc:
        down_chunk(a, kh, c)
    a("s_branch L_lnext")

    a.label("L_qkv_ltail")
    wait_for(issued, ("B", 17))
    a("s_barrier")
    stats_write(issued)
    a("s_waitcnt vmcnt(0) lgkmcnt(0)")
    a("s_barrier")
    stamp(a, 4)
    a("s_cmp_ge_u32 %s, 10", s(sRB))
    a("s_cbranch_scc1 L_done")
    stage_h(a, 0, STGQ)
    stage_h(a, 6, STGH)
    stage_o(a)
    a("v_mov_b32 v2, 0x%x", LCNT + 16)
    lds_wait(a, 2, 3, 1)
    for c in (3, 4, 5):
        down_chunk(a, 1, c)
    hflag_addr(a, LvF, LvT3, 1)
    aux_addr(a, 2)
    a("s_waitcnt vmcnt(0)")
    stamp(a, 6)
    a("v_mov_b32 v2, 0x%x", LCNT + 12)
    lds_wait(a, 2, 3, 1)
    a("s_mov_b32 %s, 0x%x", s(sT1), FLG_OFF)
    a("buffer_load_dword %s, %s, %s, %s offen sc1", v(LvF), v(LvT3), s(SWS, 4), s(sT1))
    for k in range(18):
        a("ds_write_b128 v12, %s offset:%d", v(STGQ + 4 * k, 4), (k // 6) * 12288 + (k % 6) * 1024)
    sk = a.new("L_nph")
    a("s_cmp_lg_u32 %s, 0", s(sLW))
    a("s_cbranch_scc1 %s", sk)
    a("s_waitcnt vmcnt(0)")
    spin(a, LvF, LvT3, SWS, s(sT1), 1, OPT["slp"], True)
    a.label(sk)
    a("s_waitcnt lgkmcnt(0)")
    stamp(a, 5)
    a("s_barrier")
    stamp(a, 7)
    for c in (3, 4, 5):
        down_chunk(a, 0, c)
    cnt_setup(a)
    arrive(a, (vC, C1), (vC, C3), (vC, C5), (vG, GF_))
    a("s_waitcnt vmcnt(0)")
    arrive(a, (vC, C0), (vC2, C0))
    chk_now(a, vC, C1, 4)
    for k in range(18):
        a("ds_write_b128 v12, %s offset:%d", v(STGH + 4 * k, 4), (k // 6) * 12288 + (k % 6) * 1024)
        a("s_nop %d", OPT["qpace"])
    arrive(a, (vC, C2))
    sk = a.new("L_npo")
    a("s_cmp_lg_u32 %s, 0", s(sLW))
    a("s_cbranch_scc1 %s", sk)
    spin(a, 8, 9, SWS, s(sCSD), 1, OPT["slp"])
    arrive(a, (vG, GO_))
    a.label(sk)
    chk_now(a, vC, C3, 4)
    for k in range(20):
        a("ds_write_b128 v13, %s offset:%d", v(STGO + 4 * k, 4), k * 1024)
        a("s_nop %d", OPT["qpace"])
    arrive(a, (vC, C4))
    stamp(a, 8)
    a("s_branch L_done")


def loop_tail(a, loop, vT):
    a("s_cbranch_scc1 %s", loop)
    out = a.new("L_lout")
    a("s_cmp_eq_u32 %s, 9", s(sCNT))
    a("s_cbranch_scc1 %s", out)
    signal(a, vT)
    a("s_mov_b32 %s, 9", s(sSIG))
    a("s_branch %s", loop)
    a.label(out)


def ring_updates(vA, vB):
    g1 = ["s_add_u32 %s, %s, 1" % (s(sAS), s(sAS)), "s_cmp_eq_u32 %s, 3" % s(sAS)]
    g2 = ["s_cselect_b32 %s, 0x%x, %s" % (s(sDA), (-2 * A_SLOT) & 0xffffffff, s(sT3)), "s_cselect_b32 %s, 0, %s" % (s(sAS), s(sAS))]
    adds = ["v_add_u32 %s, %s, %s" % (v(r), s(sDA), v(r)) for r in vA] + ["v_add_u32 %s, %s, %s" % (v(r), s(sDB), v(r)) for r in vB]
    return g1, g2, adds, "s_sub_u32 %s, 0, %s" % (s(sDB), s(sDB))


def loop_init(a):
    a("s_mov_b32 %s, 0", s(sCNT))
    a("s_mov_b32 %s, 0", s(sAS))
    a("s_mov_b32 %s, 0x%x", s(sDB), 2 * B_SLOT)
    a("s_mov_b32 %s, 0x%x", s(sT3), A_SLOT)
    a("s_waitcnt lgkmcnt(0)")
    srd(a, SDBG, pDBG, 256)
    srd(a, SWS, pWS, WS_BYTES)
    srd(a, SX, pX, S * D * 2)


def ffn_compute(a):
    a.c("---------------- FFN compute wave: 96 tokens x (64 gate + 64 up)")
    vA, vB = [2, 3, 4, 5], [6, 7]
    XF, WF, ACC = 24, 48, 64
    vT, vT2, vT3 = 8, 9, 10

    def acc(tt, j):
        return ACC + (tt * 4 + j) * 16

    a("s_and_b32 %s, %s, 1", s(sT0), s(sW))
    a("s_lshr_b32 %s, %s, 1", s(sT1), s(sW))
    a("v_and_b32 %s, 31, v1", v(vT))
    a("s_mul_i32 %s, %s, 96", s(sT2), s(sT0))
    a("v_add_u32 %s, %s, %s", v(vT), s(sT2), v(vT))
    a("v_lshlrev_b32 %s, 7, %s", v(vT), v(vT))
    a("v_lshrrev_b32 %s, 5, v1", v(vT2))
    a("v_bfe_u32 %s, v1, 1, 3", v(vT3))
    a("v_xor_b32 %s, %s, %s", v(vT3), v(vT3), v(vT2))
    for ks in range(4):
        a("v_xor_b32 %s, %d, %s", v(vA[ks]), 2 * ks, v(vT3))
        a("v_lshl_add_u32 %s, %s, 4, %s", v(vA[ks]), v(vA[ks]), v(vT))
    tr_lane(a, vT, vT2, 8)
    a("s_lshl_b32 %s, %s, 12", s(sT2), s(sT1))
    a("s_add_u32 %s, %s, 0x%x", s(sT2), s(sT2), B_BASE)
    a("v_add_u32 %s, %s, %s", v(vB[0]), s(sT2), v(vT))
    a("v_xor_b32 %s, 64, %s", v(vB[1]), v(vB[0]))
    for i in range(0, 192, 2):
        a("v_mov_b64 %s, 0", v(ACC + i, 2))
    loop_init(a)

    def W(hh, f):
        buf = WF + (f % 4) * 4
        ks2, j = f // 4, f % 4
        off = hh * B_SLOT + (j >> 1) * 8192 + ks2 * 2048
        return [(("W", hh, f), "ds_read_b64_tr_b16 %s, %s offset:%d" % (v(buf + 2 * e, 2), v(vB[j & 1]), off + 512 * e)) for e in range(2)]

    def X(ks):
        return [(("X", ks), "ds_read_b128 %s, %s offset:%d" % (v(XF + (ks & 1) * 12 + tt * 4, 4), v(vA[ks]), tt * 4096)) for tt in range(3)]

    g1, g2, adds, neg = ring_updates(vA, vB)
    t = Loop(32)
    for hh in range(2):
        ext = {}
        for g in range(5):
            ext[3 * g] = W(hh, g + 3)
        ext[4] = X(2 * hh + 1)
        ext[18] = W(1 - hh, 0)
        ext[19] = X((2 * hh + 2) % 4)
        ext[20] = W(1 - hh, 1)
        ext[21] = W(1 - hh, 2)
        txt = {}
        if hh == 1:
            txt = {13: g1 + g2, 14: adds[:4], 15: adds[4:] + [neg],
                   22: ["s_add_u32 %s, %s, 1" % (s(sCNT), s(sCNT)), "s_cmp_lg_u32 %s, %s" % (s(sCNT), s(sSIG))]}
        for m in range(24):
            g, tt = m // 3, m % 3
            ks2, j = g // 4, g % 4
            ks = 2 * hh + ks2
            if m == 18:
                t.barrier()
            t.mfma("v_mfma_f32_32x32x16_bf16 %s, %s, %s, %s" % (
                v(acc(tt, j), 16), v(WF + (g % 4) * 4, 4), v(XF + (ks & 1) * 12 + tt * 4, 4), v(acc(tt, j), 16)),
                [("W", hh, g), ("X", ks)])
            for r_ in ext.get(m, []):
                t.rd(*r_)
            for x in txt.get(m, []):
                t.txt(x)
    stamp(a, 1)
    a("s_barrier")
    stamp(a, 2)
    for e in t.tail_reads():
        a(e[2])
    loop = a.new("L_ffn_loop")
    a.label(loop)
    t.emit(a)
    loop_tail(a, loop, 8)
    t.emit(a, lambda: (lds_arrive(a, 8, 9, 4), a("s_nop 3")))
    stamp(a, 3)
    a("s_lshl1_add_u32 %s, %s, %s", s(sT2), s(sCB), s(sT1))
    a("s_cmp_ge_u32 %s, 27", s(sT2))
    a("s_cbranch_scc1 L_ffn_next")
    vRS, vK = [2, 4, 6], [8, 10, 12]
    vCA, vSTO = 14, 15
    CG, CU, TMP = 16, 32, 48
    a("s_waitcnt lgkmcnt(0)")
    a("v_and_b32 %s, 31, v1", v(vCA))
    a("s_mul_i32 %s, %s, 96", s(sT3), s(sT0))
    a("v_add_u32 %s, %s, %s", v(vCA), s(sT3), v(vCA))
    a("v_lshlrev_b32 %s, 3, %s", v(vCA), v(vCA))
    a("v_add_u32 %s, 0x%x, %s", v(vCA), STAT, v(vCA))
    for tt in range(3):
        a("ds_read_b64 %s, %s offset:%d", v(vRS[tt], 2), v(vCA), 256 * tt)
    a("v_lshrrev_b32 %s, 5, v1", v(vCA))
    a("v_lshlrev_b32 %s, 4, %s", v(vCA), v(vCA))
    a("s_lshl_b32 %s, %s, 8", s(sT3), s(sT1))
    a("s_add_u32 %s, %s, 0x%x", s(sT3), s(sT3), STAT + 2048)
    a("v_add_u32 %s, %s, %s", v(vCA), s(sT3), v(vCA))
    a("v_lshlrev_b32 %s, 4, v1", v(vSTO))

    def rdC(hb):
        for q in range(4):
            a("ds_read_b128 %s, %s offset:%d", v(CG + 4 * q, 4), v(vCA), (32 * hb + 8 * q) * 4)
        for q in range(4):
            a("ds_read_b128 %s, %s offset:%d", v(CU + 4 * q, 4), v(vCA), 512 + (32 * hb + 8 * q) * 4)

    rdC(0)
    sBase = [sKA, sKB, sMA]
    a("s_mul_i32 %s, %s, 6", s(sDA), s(sRB))
    a("s_mul_i32 %s, %s, 3", s(sT3), s(sT0))
    a("s_add_u32 %s, %s, %s", s(sDA), s(sDA), s(sT3))
    a("s_lshl_b32 %s, %s, 12", s(sT2), s(sT2))
    for tt in range(3):
        a("s_add_u32 %s, %s, %d", s(sT3), s(sDA), tt)
        a("s_mul_i32 %s, %s, %d", s(sBase[tt]), s(sT3), NKG * 1024)
        a("s_add_u32 %s, %s, %s", s(sBase[tt]), s(sBase[tt]), s(sT2))
        a("s_cmp_lt_u32 %s, 64", s(sT3))
        a("s_cselect_b32 %s, %s, 0x%x", s(sBase[tt]), s(sBase[tt]), OOB)
    a("s_waitcnt lgkmcnt(8)")
    for tt in range(3):
        a("v_mul_f32 %s, 0x%x, %s", v(vK[tt]), f2u(-LOG2E), v(vRS[tt] + 1))
        a("v_mul_f32 %s, %s, %s", v(vK[tt] + 1), v(vRS[tt] + 1), v(vRS[tt] + 1))
        a("v_rcp_f32 %s, %s", v(vK[tt] + 1), v(vK[tt] + 1))
    for hb in range(2):
        a("s_waitcnt lgkmcnt(0)")
        for tt in range(3):
            G_, U_ = acc(tt, hb), acc(tt, hb + 2)
            for i in range(0, 16, 2):
                a("v_pk_fma_f32 %s, %s, %s, %s op_sel_hi:[1,0,1]", v(G_ + i, 2), v(CG + i, 2), v(vRS[tt], 2), v(G_ + i, 2))
            for i in range(0, 16, 2):
                a("v_pk_fma_f32 %s, %s, %s, %s op_sel_hi:[1,0,1]", v(U_ + i, 2), v(CU + i, 2), v(vRS[tt], 2), v(U_ + i, 2))
            if tt == 2 and hb == 0:
                rdC(1)
            for i in range(0, 16, 2):
                a("v_pk_mul_f32 %s, %s, %s op_sel_hi:[1,0]", v(TMP + i, 2), v(G_ + i, 2), v(vK[tt], 2))
            for i in range(16):
                a("v_exp_f32 %s, %s", v(TMP + i), v(TMP + i))
            for i in range(0, 16, 2):
                a("v_pk_mul_f32 %s, %s, %s", v(G_ + i, 2), v(G_ + i, 2), v(U_ + i, 2))
            for i in range(0, 16, 2):
                a("v_pk_fma_f32 %s, %s, %s, %s op_sel:[0,1,1] op_sel_hi:[1,1,1]", v(TMP + i, 2), v(TMP + i, 2), v(vK[tt], 2), v(vK[tt], 2))
            for i in range(16):
                a("v_rcp_f32 %s, %s", v(TMP + i), v(TMP + i))
            a("s_nop 0")
            for i in range(0, 16, 2):
                a("v_pk_mul_f32 %s, %s, %s", v(G_ + i, 2), v(G_ + i, 2), v(TMP + i, 2))
            for i in range(8):
                a("v_cvt_pk_bf16_f32 %s, %s, %s", v(U_ + i), v(G_ + 2 * i), v(G_ + 2 * i + 1))
            o = hb * 2048
            a("buffer_store_dwordx4 %s, %s, %s, %s offen offset:%d sc1", v(U_, 4), v(vSTO), s(SWS, 4), s(sBase[tt]), o)
            a("buffer_store_dwordx4 %s, %s, %s, %s offen offset:%d sc1", v(U_ + 4, 4), v(vSTO), s(SWS, 4), s(sBase[tt]), o + 1024)
    stamp(a, 4)
    a.label("L_ffn_next")


def qkv_compute(a):
    a.c("---------------- QKV compute wave: 48 tokens x 4 heads x (q,k,v)")
    vA, vB = [2, 3], 4
    vT, vT2, vT3 = 5, 6, 7
    XF, WF, ACC = 12, 36, 76

    def acc(t_, ct):
        return ACC + (t_ * 15 + ct) * 4

    a("v_and_b32 %s, 15, v1", v(vT))
    a("s_mul_i32 %s, %s, 48", s(sT0), s(sW))
    a("v_add_u32 %s, %s, %s", v(vT), s(sT0), v(vT))
    a("v_lshlrev_b32 %s, 7, %s", v(vT), v(vT))
    a("v_lshrrev_b32 %s, 4, v1", v(vT2))
    a("v_bfe_u32 %s, v1, 1, 3", v(vT3))
    a("v_xor_b32 %s, %s, %s", v(vT3), v(vT3), v(vT2))
    a("v_lshl_add_u32 %s, %s, 4, %s", v(vA[0]), v(vT3), v(vT))
    a("v_xor_b32 %s, 64, %s", v(vA[1]), v(vA[0]))
    a("v_lshrrev_b32 %s, 2, v1", v(vT))
    a("v_mul_u32_u24 %s, 480, %s", v(vT), v(vT))
    a("v_and_b32 %s, 3, v1", v(vT2))
    a("v_mul_u32_u24 %s, 40, %s", v(vT2), v(vT2))
    a("v_add_u32 %s, %s, %s", v(vB), v(vT), v(vT2))
    a("v_add_u32 %s, 0x%x, %s", v(vB), B_BASE, v(vB))
    for i in range(0, 180, 2):
        a("v_mov_b64 %s, 0", v(ACC + i, 2))
    loop_init(a)

    def W(hh, f):
        buf = WF + ((hh * 15 + f) % 10) * 4
        off = hh * B_SLOT + (f // 5) * 160 + (f % 5) * 8
        return [(("W", hh, f), "ds_read_b64_tr_b16 %s, %s offset:%d" % (v(buf + 2 * e, 2), v(vB), off + 7680 * e)) for e in range(2)]

    def X(hh):
        return [(("X", hh), "ds_read_b128 %s, %s offset:%d" % (v(XF + hh * 12 + t_ * 4, 4), v(vA[hh]), t_ * 2048)) for t_ in range(3)]

    g1, g2, adds, neg = ring_updates(vA, [vB])
    t = Loop(16)
    for hh in range(2):
        ext = {}
        q = []
        for f in range(6, 15):
            q += W(hh, f)
        for i, r_ in enumerate(q):
            ext[i] = [r_]
        q = X(1 - hh)
        for f in range(6):
            q += W(1 - hh, f)
        for i, r_ in enumerate(q):
            ext[30 + i] = [r_]
        txt = {}
        if hh == 1:
            txt = {19: g1, 20: g2, 21: adds[:2], 22: [adds[2], neg],
                   24: ["s_add_u32 %s, %s, 1" % (s(sCNT), s(sCNT)), "s_cmp_lg_u32 %s, %s" % (s(sCNT), s(sSIG))]}
        for m in range(45):
            g, t_ = m // 3, m % 3
            if m == 30:
                t.barrier()
            t.mfma("v_mfma_f32_16x16x32_bf16 %s, %s, %s, %s" % (
                v(acc(t_, g), 4), v(WF + ((hh * 15 + g) % 10) * 4, 4), v(XF + hh * 12 + t_ * 4, 4), v(acc(t_, g), 4)),
                [("W", hh, g), ("X", hh)])
            for r_ in ext.get(m, []):
                t.rd(*r_)
            for x in txt.get(m, []):
                t.txt(x)
    stamp(a, 1)
    a("s_barrier")
    stamp(a, 2)
    for e in t.tail_reads():
        a(e[2])
    loop = a.new("L_qkv_loop")
    a.label(loop)
    t.emit(a)
    loop_tail(a, loop, 6)
    t.emit(a, lambda: (lds_arrive(a, 6, 7, 4), a("s_nop 3")))
    stamp(a, 3)

    def blk(t_, mat):
        return ACC + (t_ * 15 + mat * 5) * 4

    vTok, vKV0, vKV1 = 2, 3, 4
    vRS = [6, 8, 10]
    CS = 12
    a("s_waitcnt lgkmcnt(0)")
    a("v_bfe_u32 %s, v1, 1, 3", v(vTok))
    a("v_mul_u32_u24 %s, 6, %s", v(vTok), v(vTok))
    a("v_and_b32 %s, 1, v1", v(vT))
    a("v_add3_u32 %s, %s, %s, %s", v(vTok), v(vTok), v(vT), s(sT0))
    a("v_lshlrev_b32 %s, 3, %s", v(vT), v(vTok))
    a("v_add_u32 %s, 0x%x, %s", v(vT), STAT, v(vT))
    for t_ in range(3):
        a("ds_read_b64 %s, %s offset:%d", v(vRS[t_], 2), v(vT), 16 * t_)
    a("v_lshrrev_b32 %s, 4, v1", v(72))
    a("v_mul_u32_u24 %s, 80, %s", v(vT), v(72))
    a("v_add_u32 %s, 0x%x, %s", v(vT), STAT + 2048, v(vT))
    order = [2, 1, 0]
    for mat in order:
        for tq in range(5):
            a("ds_read_b128 %s, %s offset:%d", v(CS + (mat * 5 + tq) * 4, 4), v(vT), mat * 320 + tq * 16)
    a("v_mul_u32_u24 %s, %d, %s", v(vKV0), KV_SG, v(72))
    a("v_lshl_add_u32 %s, %s, 4, %s", v(vKV0), v(vTok), v(vKV0))
    a("v_add_u32 %s, 32, %s", v(vKV0), v(vKV0))
    a("v_add_u32 %s, %d, %s", v(vKV1), 4 * KV_S, v(vKV0))

    def kvaddr(unit, srow):
        base = vKV0 if unit < 4 else vKV1
        return v(base), (unit % 4) * KV_S + (srow + 7) * 32

    c1 = (20 ** -0.5) * LOG2E

    def QS(t_):
        return blk(t_, 0) + 18

    a("v_mov_b32 v74, 0x%x", LCNT + 16)
    lds_wait(a, 74, 75)
    nz = a.new("L_nz")
    a("s_or_b32 %s, %s, %s", s(sT1), s(sRB), s(sW))
    a("s_cbranch_scc1 %s", nz)
    a("v_mul_u32_u24 v73, %d, v72", KV_SG)
    a("v_and_b32 v74, 15, v1")
    a("v_lshl_add_u32 v73, v74, 4, v73")
    a("v_add_u32 v72, %d, v73", 4 * KV_S)
    a("v_mov_b64 v[74:75], 0")
    for u_ in range(8):
        for e in range(2):
            a("ds_write_b64 %s, v[74:75] offset:%d", "v73" if u_ < 4 else "v72", (u_ % 4) * KV_S + 8 * e)
    a.label(nz)
    a("s_waitcnt lgkmcnt(0)")
    for mat in order:
        if mat == 0:
            lds_arrive(a, 72, 73, 1)
        for t_ in range(3):
            b = blk(t_, mat)
            for i in range(0, 20, 2):
                a("v_pk_fma_f32 %s, %s, %s, %s op_sel_hi:[1,0,1]", v(b + i, 2), v(CS + mat * 20 + i, 2), v(vRS[t_], 2), v(b + i, 2))
            if mat != 0:
                for i in range(0, 20, 2):
                    a("v_pk_mul_f32 %s, %s, %s op_sel:[0,1] op_sel_hi:[1,1]", v(b + i, 2), v(b + i, 2), v(vRS[t_], 2))
                    if mat == 2 and i % 4 == 2:
                        ad, off = kvaddr(3 + i // 4, t_)
                        a("ds_write_b128 %s, %s offset:%d", ad, v(b + (i // 4) * 4, 4), off)
            if mat != 2:
                for i in range(10):
                    a("v_cvt_pk_bf16_f32 %s, %s, %s", v(b + i), v(b + 2 * i), v(b + 2 * i + 1))
            if mat == 1:
                for u_, n_ in ((0, 4), (1, 4), (2, 2)):
                    ad, off = kvaddr(u_, t_)
                    a("ds_write_b%d %s, %s offset:%d", 32 * n_, ad, v(b + 4 * u_, n_), off)
            if mat == 0:
                a("v_mul_f32 %s, 0x%x, %s", v(QS(t_)), f2u(c1), v(vRS[t_] + 1))
    lds_wait(a, 72, 73)
    stamp(a, 5, None, 1)
    KH = 6
    for sr in range(-1, -8, -1):
        r0 = KH + (sr + 7) * 10
        for u_, n_ in ((0, 4), (1, 4), (2, 2)):
            ad, off = kvaddr(u_, sr)
            a("ds_read_b%d %s, %s offset:%d", 32 * n_, v(r0 + 4 * u_, n_), ad, off)

    def Lg(t_, w):
        return blk(t_, 0) + 10 + w

    def krow(sr):
        return blk(sr, 1) if sr >= 0 else KH + (sr + 7) * 10

    nread = 21
    for sr in (2, 1, 0, -1, -2, -3, -4, -5, -6, -7):
        if sr < 0:
            nread -= 3
            a("s_waitcnt lgkmcnt(%d)", min(nread, 15))
            if sr == -7:
                lds_arrive(a, 74, 75, 2)
        ts = [t_ for t_ in range(3) if 0 <= t_ - sr <= 7]
        for i in range(10):
            for t_ in ts:
                w = t_ - sr
                if i == 0:
                    a("v_dot2_f32_bf16 %s, %s, %s, 0", v(Lg(t_, w)), v(blk(t_, 0) + i), v(krow(sr) + i))
                else:
                    a("v_dot2c_f32_bf16 %s, %s, %s", v(Lg(t_, w)), v(blk(t_, 0) + i), v(krow(sr) + i))
            if i == 0:
                a("s_nop %d", 3 - len(ts))
    VH = [6, 26, 46]

    def rdV(sr, buf):
        for u_ in range(5):
            ad, off = kvaddr(3 + u_, sr)
            a("ds_read_b128 %s, %s offset:%d", v(buf + 4 * u_, 4), ad, off)

    stamp(a, 6, None, 1)
    rdV(-1, VH[0]); rdV(-2, VH[1]); rdV(-3, VH[2])
    skip = a.new("L_nomask")
    a("s_cmp_lg_u32 %s, 0", s(sRB))
    a("s_cbranch_scc1 %s", skip)
    a("v_mov_b32 %s, 0x%x", v(70), f2u(-1e30))
    for t_ in range(3):
        for w in range(t_ + 1, 8):
            a("v_cmp_le_u32 vcc, %d, %s", 2 * (w - t_), v(vTok))
            a("s_nop 1")
            a("v_cndmask_b32 %s, %s, %s, vcc", v(Lg(t_, w)), v(70), v(Lg(t_, w)))
    a.label(skip)
    M = [66, 68, 70]
    for t_ in range(3):
        a("v_max3_f32 %s, %s, %s, %s", v(M[t_]), v(Lg(t_, 0)), v(Lg(t_, 1)), v(Lg(t_, 2)))
    for t_ in range(3):
        a("v_max3_f32 %s, %s, %s, %s", v(M[t_]), v(M[t_]), v(Lg(t_, 3)), v(Lg(t_, 4)))
    for t_ in range(3):
        a("v_max3_f32 %s, %s, %s, %s", v(M[t_]), v(M[t_]), v(Lg(t_, 5)), v(Lg(t_, 6)))
    for t_ in range(3):
        a("v_max_f32 %s, %s, %s", v(M[t_]), v(M[t_]), v(Lg(t_, 7)))
    for t_ in range(3):
        a("v_mul_f32 %s, %s, %s", v(M[t_]), v(QS(t_)), v(M[t_]))
    for t_ in range(3):
        for w in range(0, 8, 2):
            a("v_pk_fma_f32 %s, %s, %s, %s op_sel_hi:[1,0,0] neg_lo:[0,0,1] neg_hi:[0,0,1]",
              v(Lg(t_, w), 2), v(Lg(t_, w), 2), v(QS(t_), 2), v(M[t_], 2))
    for t_ in range(3):
        for w in range(8):
            a("v_exp_f32 %s, %s", v(Lg(t_, w)), v(Lg(t_, w)))
    SM = M
    for t_ in range(3):
        a("v_pk_add_f32 %s, %s, %s", v(SM[t_], 2), v(Lg(t_, 0), 2), v(Lg(t_, 2), 2))
    for t_ in range(3):
        a("v_pk_add_f32 %s, %s, %s", v(SM[t_], 2), v(SM[t_], 2), v(Lg(t_, 4), 2))
    for t_ in range(3):
        a("v_pk_add_f32 %s, %s, %s", v(SM[t_], 2), v(SM[t_], 2), v(Lg(t_, 6), 2))
    for t_ in range(3):
        a("v_add_f32 %s, %s, %s", v(SM[t_]), v(SM[t_]), v(SM[t_] + 1))
    for t_ in range(3):
        a("v_rcp_f32 %s, %s", v(SM[t_]), v(SM[t_]))
    a("s_nop 0")
    for t_ in range(3):
        for w in range(0, 8, 2):
            a("v_pk_mul_f32 %s, %s, %s op_sel_hi:[1,0]", v(Lg(t_, w), 2), v(Lg(t_, w), 2), v(SM[t_], 2))

    def O(t_):
        return blk(t_, 1)

    started = set()

    def pv(sr, vr):
        for t_ in range(3):
            w = t_ - sr
            if not (0 <= w <= 7):
                continue
            p_ = Lg(t_, w)
            pp, sel = p_ & ~1, p_ & 1
            for i in range(0, 20, 2):
                if t_ not in started:
                    a("v_pk_mul_f32 %s, %s, %s op_sel:[0,%d] op_sel_hi:[1,%d]", v(O(t_) + i, 2), v(vr + i, 2), v(pp, 2), sel, sel)
                else:
                    a("v_pk_fma_f32 %s, %s, %s, %s op_sel:[0,%d,0] op_sel_hi:[1,%d,1]",
                      v(O(t_) + i, 2), v(vr + i, 2), v(pp, 2), v(O(t_) + i, 2), sel, sel)
            started.add(t_)

    vSW, vSW2, vSR = 66, 67, 68
    vGA = [69, 70, 71, 72]

    def stage(t_):
        o_, pk = O(t_), blk(t_, 0)
        for i, d in enumerate((0, 2, 8, 10, 4, 6, 12, 14, 16, 18)):
            a("v_cvt_pk_bf16_f32 %s, %s, %s", v(pk + i), v(o_ + d), v(o_ + d + 1))
        a("ds_write_b128 %s, %s offset:%d", v(vSW), v(pk, 4), 32 * t_)
        a("ds_write_b128 %s, %s offset:%d", v(vSW), v(pk + 4, 4), 768 + 32 * t_)
        a("ds_write_b64 %s, %s offset:%d", v(vSW2), v(pk + 8, 2), 32 * t_)

    stamp(a, 7, None, 1)
    for sr in (2, 1, 0):
        pv(sr, blk(sr, 2))
    rdV(-4, blk(0, 2)); rdV(-5, blk(1, 2)); rdV(-6, blk(2, 2))
    a("s_mul_i32 %s, %s, %d", s(sT1), s(sW), 7680 - 768)
    a("v_lshrrev_b32 %s, 4, v1", v(vT))
    a("v_mul_u32_u24 %s, 1536, %s", v(vSW), v(vT))
    a("v_lshl_add_u32 %s, %s, 4, %s", v(vSR), v(vTok), s(sT1))
    a("v_add_u32 %s, %s, %s", v(vSW), v(vSW), v(vSR))
    a("v_and_b32 %s, 1, %s", v(vSW2), v(vT))
    a("v_mul_u32_u24 %s, 768, %s", v(vSW2), v(vSW2))
    a("v_lshrrev_b32 %s, 1, %s", v(vT), v(vT))
    a("v_lshl_add_u32 %s, %s, 3, %s", v(vSW2), v(vT), v(vSW2))
    a("v_add_u32 %s, %s, %s", v(vSW2), v(vSW2), v(vSR))
    a("v_add_u32 %s, %d, %s", v(vSW2), 8 * 768, v(vSW2))
    a("s_mul_i32 %s, %s, 7680", s(sT1), s(sW))
    a("v_lshl_add_u32 %s, v1, 4, %s", v(vSR), s(sT1))
    a("s_mov_b32 %s, %d", s(sT2), NKG * 1024)
    a("s_mul_i32 %s, %s, %d", s(sKA), s(sRB), U)
    a("s_add_u32 %s, %s, %d", s(sKB), s(sKA), U)
    a("s_min_u32 %s, %s, 2048", s(sKB), s(sKB))
    a("s_sub_u32 %s, %s, %s", s(sKB), s(sKB), s(sKA))
    a("s_add_u32 %s, %s, %s", s(sT1), s(sROW0), s(sT0))
    a("v_mov_b32 %s, 0x%x", v(75), OOB)
    for i in range(3):
        thr = 48 * (i + 1) - 64 * i
        a("v_cmp_le_u32 vcc, %d, v1", thr)
        a("v_add_u32 %s, %d, v1", v(73), 16 * i)
        a("v_mov_b32 %s, %d", v(74), 512 * i)
        a("v_cndmask_b32 %s, 0, 48, vcc", v(vT))
        a("v_sub_u32 %s, %s, %s", v(73), v(73), v(vT))
        a("v_add_u32 %s, %s, %s", v(73), s(sT1), v(73))
        a("v_cndmask_b32 %s, 0, 1, vcc", v(vT))
        a("v_lshl_add_u32 %s, %s, 9, %s", v(74), v(vT), v(74))
        a("v_lshrrev_b32 %s, 5, %s", v(vT), v(73))
        a("v_mul_lo_u32 %s, %s, %s", v(vT), v(vT), s(sT2))
        a("v_add_u32 %s, %s, %s", v(74), v(74), v(vT))
        a("v_and_b32 %s, 31, %s", v(vT), v(73))
        a("v_lshl_add_u32 %s, %s, 4, %s", v(74), v(vT), v(74))
        a("v_subrev_u32 %s, %s, %s", v(73), s(sKA), v(73))
        a("v_cmp_gt_u32 vcc, %s, %s", s(sKB), v(73))
        a("s_nop 1")
        a("v_cndmask_b32 %s, %s, %s, vcc", v(vGA[i]), v(75), v(74))
    a("v_cmp_gt_u32 vcc, 32, v1")
    a("s_mul_i32 %s, %s, 5", s(sT1), s(sCB))
    a("s_add_u32 %s, %s, 108", s(sT1), s(sT1))
    a("v_cndmask_b32 %s, %s, %s, vcc", v(vGA[3]), v(75), v(vGA[1]))
    a("s_lshl_b32 %s, %s, 10", s(sT1), s(sT1))
    a("s_add_u32 %s, %s, 4096", s(sT2), s(sT1))
    a("s_waitcnt lgkmcnt(15)")
    pv(-1, VH[0])
    rdV(-7, VH[0])
    pv(-2, VH[1]); pv(-3, VH[2])
    a("s_waitcnt lgkmcnt(5)")
    pv(-4, blk(0, 2)); pv(-5, blk(1, 2))
    a("v_mov_b32 v73, 0x%x", LCNT + 8)
    lds_wait(a, 73, 74)
    stage(2)
    pv(-6, blk(2, 2))
    stage(1)
    a("s_waitcnt lgkmcnt(6)")
    pv(-7, VH[0])
    stage(0)
    stamp(a, 8, None, 1)
    a("s_waitcnt lgkmcnt(0)")
    RB = 6
    for i in range(8):
        a("ds_read_b128 %s, %s offset:%d", v(RB + 4 * i, 4), v(vSR), 1024 * i)
    for i in range(8):
        j, ii = i // 3, i % 3
        ga = vGA[3] if i == 7 else vGA[ii]
        a("s_waitcnt lgkmcnt(%d)", 7 - i)
        a("buffer_store_dwordx4 %s, %s, %s, %s offen offset:%d sc1", v(RB + 4 * i, 4), v(ga), s(SWS, 4),
          s(sT2 if j == 2 else sT1), 2048 * (j & 1))
    lds_arrive(a, 2, 3, 3)
    stamp(a, 4)
    a("s_branch L_p3")


C0, C1, C2, C3, C4, C5, CEF, CES = 0, 1, 2, 3, 4, 5, 6, 9
GO_, GF_ = 8, 9
vC, vC2, vG, vOne, vChk = 2, 3, 14, 15, 0


def cnt_setup(a):
    a("s_lshl_b32 %s, %s, 6", s(sT0), s(sKH))
    a("s_add_u32 %s, %s, 0x%x", s(sT1), s(sT0), LCNT + 64)
    a("v_mov_b32 %s, %s", v(vC), s(sT1))
    a("s_sub_u32 %s, 0x%x, %s", s(sT1), LCNT + 128, s(sT0))
    a("v_mov_b32 %s, %s", v(vC2), s(sT1))
    a("v_mov_b32 %s, 0x%x", v(vG), LCNT)
    a("v_mov_b32 %s, 1", v(vOne))


def arrive(a, *items):
    a("s_mov_b64 exec, 1")
    for base, w in items:
        a("ds_add_u32 %s, %s offset:%d", v(base), v(vOne), 4 * w)
    a("s_mov_b64 exec, -1")


def chk_now(a, base, w, n, first=True):
    lp, ex = a.new("L_cl"), a.new("L_cx")
    a("s_mov_b32 s100, 0x400000")
    a.label(lp)
    a("ds_read_b32 %s, %s offset:%d", v(vChk), v(base), 4 * w)
    a("s_sub_u32 s100, s100, 1")
    a("s_cbranch_scc1 %s", ex)
    a("s_waitcnt lgkmcnt(0)")
    a("v_readfirstlane_b32 %s, %s", s(sSPIN), v(vChk))
    a("s_nop 1")
    a("s_cmp_lt_u32 %s, %d", s(sSPIN), n)
    a("s_cbranch_scc1 %s", lp)
    a.label(ex)


def p3_body(a, aux, regs):
    vRW, vT, vT2, vFl, vFo, vXA, vXO = [4, 5], 6, 7, 8, 9, 10, 11
    WF, ACCF, ACCS, XR, XN, XE, R0, TM, LA, LW = regs
    st = 2 if aux else 1
    NG, N1, N2, N3 = 74 // st, 18 // st, 36 // st, 54 // st
    WD = LW + 1
    issued, lds, cur = [], [], [0]
    slow = []

    def ldx(j):
        i = j * st
        if i < 54:
            g = i % 6
            if g == 0:
                a("s_add_u32 %s, %s, %s", s(sT3), s(sXB), s(sRX))
                wrap_add(a, sRX, 6144, 54 * 1024)
            if g == 4:
                a("s_add_u32 %s, %s, 4096", s(sT3), s(sT3))
        else:
            g = i - 54
            if g % 4 == 0:
                a("s_add_u32 %s, %s, %d", s(sT3), s(sXO), g * 1024)
        a("buffer_load_dwordx4 %s, %s, %s, %s offen offset:%d sc1", v(XR + (j % XN) * 4, 4), v(vXO), s(SWS, 4), s(sT3), (g % 4) * 1024)
        issued.append(("X", j))

    def after(tag):
        return len(issued) - 1 - max(k for k, x in enumerate(issued) if x == tag)

    def lgk(tag):
        return min(15, len(lds) - 1 - max(k for k, x in enumerate(lds) if x == tag))

    def rd(j, k):
        reg = 1 if (N1 <= j < N2 or j >= N3) else 0
        if reg != cur[0]:
            for q in range(2):
                a("v_%s_u32 %s, %d, %s", "add" if reg else "subrev", v(vRW[q]), D_REG, v(vRW[q]))
            cur[0] = reg
        i = j * st
        off = (i - 54 if i >= 54 else i % 18) * 2048
        buf = WF + ((j % WD) * 2 + k) * 4
        for e in range(2):
            a("ds_read_b64_tr_b16 %s, %s offset:%d", v(buf + 2 * e, 2), v(vRW[k]), off + 1024 * e)
            lds.append(("W", j))

    def arr(*items):
        arrive(a, *items)
        lds.extend([("A", 0)] * len(items))

    e_ = 2 if aux else None
    jw = N3 + (1 if aux else 2)
    jr = jw + (2 if aux else 4)
    j0 = jr + (1 if aux else 2)
    per = 4 if aux else 2
    ws1, ws2 = N1 + OPT["wsk"], N2 + OPT["wsk"]
    checks = {N1 - LW: (vC, C0, 4), N2 - LW: (vC, C2, 2), N3 - LW: (vC, C4, 2), N3 - LA: (vG, GO_, 1), jw: (vC, C5, 4)}
    if aux:
        checks[ws1] = (vC, C1, 4)
        checks[ws2] = (vC, C3, 4)
        checks[jr] = (vG, 10, 4)
    else:
        checks[jr] = (12, 0, 1)
    checks[NG - 1] = (vG, GF_, 8)
    assert len(checks) == (9 if aux else 7)

    for j in range(LA):
        ldx(j)
    for j in range(LW):
        rd(j, 0)
        rd(j, 1)
    wq = []
    for j in range(NG):
        nxt = j + LW
        lg = lgk(("W", j))
        if j in checks:
            lg = min(lg, lgk(("CK", j)))
        if j == j0:
            lg = min(lg, lgk(("ER", 0)))
        a("s_waitcnt vmcnt(%d) lgkmcnt(%d)", after(("X", j)), lg)
        if j in checks:
            base, w, n = checks[j]
            sl, bk = a.new("L_sl"), a.new("L_bk")
            a("v_readfirstlane_b32 %s, %s", s(sSPIN), v(vChk))
            a("s_nop 0")
            a("s_cmp_lt_u32 %s, %d", s(sSPIN), n)
            a("s_cbranch_scc1 %s", sl)
            a.label(bk)
            slow.append((sl, bk, base, w, n))
        if j == j0:
            arr((vG, GF_))
        p3s = {0: 2, 6: 3, 12: 4, 18: 5, 30: 6, 44: 7, 60: 8}
        if j * st in p3s:
            stamp(a, p3s[j * st], None, 2)
        if aux and j == ws1:
            wq = [(12, STGH + 4 * k, (k // 6) * 12288 + (k % 6) * 1024, C2) for k in range(18)]
        if aux and j == ws2:
            wq = [(13, STGO + 4 * k, k * 1024, C4) for k in range(20)]
        acc = ACCF if j < N3 else ACCS
        for k in range(2):
            buf = WF + ((j % WD) * 2 + k) * 4
            if j == N3 and aux or j in (0, N3) and not aux or j == 0:
                cin = "0"
            else:
                cin = v(acc + 16 * k, 16)
            a("v_mfma_f32_32x32x16_bf16 %s, %s, %s, %s", v(acc + 16 * k, 16), v(buf, 4), v(XR + (j % XN) * 4, 4), cin)
            if k == 0 and j + LA < NG:
                ldx(j + LA)
            if nxt < NG:
                rd(nxt, k)
            for _ in range(OPT["wper"] // 2 + (k == 0 and OPT["wper"] & 1)):
                if wq:
                    ad, rg, off, cw = wq.pop(0)
                    a("ds_write_b128 %s, %s offset:%d", v(ad), v(rg, 4), off)
                    lds.append(("SW", 0))
                    if not wq:
                        arr((vC, cw))
        if nxt + 1 in (N1, N2, N3):
            arr((vC, {N1: C1, N2: C3, N3: C5}[nxt + 1]))
        if aux and j == N3 - LA - 5:
            a("buffer_load_dword %s, %s, %s, %s offen sc1", v(vFl), v(vFo), s(SWS, 4), s(sCSD))
            issued.append(("FO", 0))
        if aux and j == N3 - LA - 3:
            np_ = a.new("L_npo")
            a("s_cmp_lg_u32 %s, 4", s(sW))
            a("s_cbranch_scc1 %s", np_)
            a("s_waitcnt vmcnt(%d)", after(("FO", 0)))
            spin(a, vFl, vFo, SWS, s(sCSD), 1, OPT["slp"], True)
            arrive(a, (vG, GO_))
            a.label(np_)
        if j == jw:
            assert not wq
            a("s_mul_i32 %s, %s, %d", s(sT0), s(sKH), D_KH)
            a("s_sub_u32 %s, %d, %s", s(sT1), D_KH, s(sT0))
            if not aux:
                a("s_lshl_b32 %s, %s, 12", s(sT2), s(sR))
                a("s_add_u32 %s, %s, %s", s(sT0), s(sT0), s(sT2))
                a("s_add_u32 %s, %s, %s", s(sT1), s(sT1), s(sT2))
            a("v_add_u32 %s, %s, %s", v(vT), s(sT0), v(vXO))
            a("v_add_u32 %s, %s, %s", v(vT2), s(sT1), v(vXO))
            if aux:
                a("s_lshl_b32 %s, %s, 12", s(sT1), s(sPAR))
                a("v_add_u32 v12, %s, %s", s(sT1), v(vT))
            xw(a, aux, ACCF)
            if aux:
                arr((vG, 10))
            else:
                arr((13, 0))
            lds.extend([("EW", 0)] * 4)
        if j == jr:
            for p_, (ad, off) in enumerate(xsrc(aux)):
                for q in range(4):
                    a("ds_read_b128 %s, %s offset:%d", v(R0 + 16 * p_ + 4 * q, 4), v(ad), off + q * 1024)
                    lds.append(("ER", 0))
        if j + 1 in checks:
            base, w, n = checks[j + 1]
            a("ds_read_b32 %s, %s offset:%d", v(vChk), v(base), 4 * w)
            lds.append(("CK", j + 1))
        ns = 16 // per
        if j0 <= j < j0 + ns:
            for e in range(per * (j - j0), per * (j - j0 + 1)):
                for p_ in range(3 if aux else 1):
                    a("v_add_f32 %s, %s, %s", v(ACCF + e), v(ACCF + e), v(R0 + 16 * p_ + e))
                a("v_mul_f32 %s, 0x%x, %s", v(TM + e), f2u(-LOG2E), v(ACCF + e))
                a("v_exp_f32 %s, %s", v(TM + e), v(TM + e))
        if j0 + 1 <= j < j0 + 1 + ns:
            for e in range(per * (j - j0 - 1), per * (j - j0)):
                a("v_add_f32 %s, 1.0, %s", v(TM + e), v(TM + e))
                a("v_rcp_f32 %s, %s", v(TM + e), v(TM + e))
        if j0 + 2 <= j < j0 + 2 + ns:
            for e in range(per * (j - j0 - 2), per * (j - j0 - 1)):
                a("v_mul_f32 %s, %s, %s", v(ACCF + e), v(ACCF + e), v(TM + e))
    assert j0 + 2 + ns <= NG
    stamp(a, 8, 11)
    for i in range(8):
        a("v_lshlrev_b32 %s, 16, %s", v(TM + 2 * i), v(XE + i))
        a("v_and_b32 %s, 0xffff0000, %s", v(TM + 2 * i + 1), v(XE + i))
    xw(a, aux, ACCS)
    if aux:
        arrive(a, (vG, 11))
        a("s_cmp_lg_u32 %s, 0", s(sPAR))
        a("s_cbranch_scc1 L_done")
    else:
        arrive(a, (13, 3))
    for i in range(0, 16, 2):
        a("v_pk_fma_f32 %s, %s, %s, %s", v(TM + i, 2), v(ACCF + i, 2), v(ACCS + i, 2), v(TM + i, 2))
    if aux:
        chk_now(a, vG, 11, 4)
    else:
        chk_now(a, 12, 3, 1)
    srcs = xsrc(aux)
    n = len(srcs)
    for q in range(4):
        for p_, (ad, off) in enumerate(srcs):
            a("ds_read_b128 %s, %s offset:%d", v(R0 + 16 * p_ + 4 * q, 4), v(ad), off + q * 1024)
    for q in range(4):
        a("s_waitcnt lgkmcnt(%d)", n * (3 - q))
        for p_ in range(n):
            for i in (4 * q, 4 * q + 2):
                a("v_pk_fma_f32 %s, %s, %s, %s", v(TM + i, 2), v(ACCF + i, 2), v(R0 + 16 * p_ + i, 2), v(TM + i, 2))
        for i in (2 * q, 2 * q + 1):
            a("v_cvt_pk_bf16_f32 %s, %s, %s", v(ACCS + i), v(TM + 2 * i), v(TM + 2 * i + 1))
        a("buffer_store_dwordx2 %s, %s, %s, 0 offen offset:%d", v(ACCS + 2 * q, 2), v(vXA), s(SOUT, 4), 16 * q)
    return slow


def xw(a, aux, acc):
    vT = 6
    if not aux:
        for q in range(4):
            a("ds_write_b128 %s, %s offset:%d", v(vT), v(acc + 16 + 4 * q, 4), q * 1024)
        return
    for q in range(4):
        a("ds_write_b128 v12, %s offset:%d", v(acc + 16 + 4 * q, 4), 8192 + q * 1024)
    sk = a.new("L_p0")
    a("s_cmp_eq_u32 %s, 0", s(sPAR))
    a("s_cbranch_scc1 %s", sk)
    for q in range(4):
        a("ds_write_b128 %s, %s offset:%d", v(vT), v(acc + 4 * q, 4), 16384 + q * 1024)
    a.label(sk)


def xsrc(aux):
    return [(7, 8192), (7, 12288), (6, 16384)] if aux else [(7, 0)]


def emit_slow(a, slow):
    for sl, bk, base, w, n in slow:
        a.label(sl)
        chk_now(a, base, w, n)
        a("s_branch %s", bk)


def xe_load(a, XE):
    for q in range(4):
        a("buffer_load_dwordx2 %s, v10, %s, 0 offen offset:%d", v(XE + 2 * q, 2), s(SX, 4), 16 * q)


def p3_addr(a, aux):
    vRW, vT, vT2, vXA, vXO = [4, 5], 6, 7, 10, 11
    a("v_lshlrev_b32 %s, 4, v1", v(vXO))
    srd(a, SOUT, pOUT, S * D * 2)
    a("v_and_b32 %s, 31, v1", v(vXA))
    a("s_lshl_b32 %s, %s, 5", s(sT0), s(sRT))
    a("v_add_u32 %s, %s, %s", v(vXA), s(sT0), v(vXA))
    a("v_mul_u32_u24 %s, 1280, %s", v(vXA), v(vXA))
    a("v_lshrrev_b32 %s, 5, v1", v(vT))
    a("v_lshl_add_u32 %s, %s, 3, %s", v(vXA), v(vT), v(vXA))
    a("s_lshl_b32 %s, %s, 7", s(sT0), s(sCB3))
    a("s_lshl_b32 %s, %s, 6", s(sT2), s(sKH))
    a("s_add_u32 %s, %s, %s", s(sT0), s(sT0), s(sT2))
    a("v_add_u32 %s, %s, %s", v(vXA), s(sT0), v(vXA))
    tr_lane(a, vT, vT2, 4)
    a("v_xor_b32 %s, %s, %s", v(vT), s(sT2), v(vT))
    a("s_mul_i32 %s, %s, %d", s(sT0), s(sKH), D_KH)
    if aux:
        a("s_lshl_b32 %s, %s, 11", s(sT2), s(sPAR))
        a("s_add_u32 %s, %s, %s", s(sT0), s(sT0), s(sT2))
    a("v_add_u32 %s, %s, %s", v(vRW[0]), s(sT0), v(vT))
    a("v_xor_b32 %s, 64, %s", v(vRW[1]), v(vRW[0]))
    a("s_mul_i32 %s, %s, %d", s(sT2), s(sRT), NKG)
    if aux:
        a("s_add_u32 %s, %s, %s", s(sT2), s(sT2), s(sPAR))
    a("s_mul_i32 %s, %s, 54", s(sT0), s(sKH))
    a("s_add_u32 %s, %s, %s", s(sXB), s(sT2), s(sT0))
    a("s_lshl_b32 %s, %s, 10", s(sXB), s(sXB))
    a("s_mul_i32 %s, %s, 20", s(sT0), s(sKH))
    a("s_add_u32 %s, %s, %s", s(sXO), s(sT2), s(sT0))
    a("s_add_u32 %s, %s, 108", s(sXO), s(sXO))
    a("s_lshl_b32 %s, %s, 10", s(sXO), s(sXO))


def aux_addr(a, nr):
    vFl, vFo = 8, 9
    a("s_mul_i32 %s, %s, %d", s(sT0), s(sKH), D_KH)
    a("s_mul_i32 %s, %s, 6144", s(sT1), s(sPAR))
    a("s_add_u32 %s, %s, %s", s(sT1), s(sT1), s(sT0))
    a("v_lshl_add_u32 v12, v1, 4, %s", s(sT1))
    a("s_mul_i32 %s, %s, 20480", s(sT1), s(sPAR))
    a("s_add_u32 %s, %s, %s", s(sT1), s(sT1), s(sT0))
    a("s_add_u32 %s, %s, %d", s(sT1), s(sT1), D_REG)
    a("v_lshl_add_u32 v13, v1, 4, %s", s(sT1))
    mag = (1 << 20) // U + 1
    a("v_lshrrev_b32 %s, 5, v1", v(vFl))
    a("v_mul_u32_u24 %s, %d, %s", v(vFl), 32 * nr - 1, v(vFl))
    a("s_lshl_b32 %s, %s, 5", s(sT0), s(sR0))
    a("v_add_u32 %s, %s, %s", v(vFl), s(sT0), v(vFl))
    a("v_mul_u32_u24 %s, %d, %s", v(vFl), mag, v(vFl))
    a("v_lshrrev_b32 %s, 20, %s", v(vFl), v(vFl))
    a("v_mul_u32_u24 %s, %d, %s", v(vFl), FSTR, v(vFl))
    a("v_and_b32 %s, 7, v1", v(vFo))
    a("v_lshl_add_u32 %s, %s, 2, %s", v(vFo), v(vFo), v(vFl))
    a("s_mov_b32 %s, 0x%x", s(sCSD), FLG_OFF + 32 * FSTR)


def phase3(a):
    a.label("L_p3")
    a.c("---------------- phase 3, main waves: row tile r = w&1, K half w>>1")
    vFl, vFo = 8, 9
    LA = OPT["la"]
    regs = (16, 72, 104, 136, 18, 208, 216, 232, LA, OPT["lw"])
    stamp(a, 5)
    hflag_addr(a, vFl, vFo, 2)
    a("s_and_b32 %s, %s, 1", s(sR), s(sW))
    a("s_lshr_b32 %s, %s, 1", s(sKH), s(sW))
    a("s_add_u32 %s, %s, %s", s(sRT), s(sR0), s(sR))
    p3_rot(a)
    p3_addr(a, False)
    n2 = a.new("L_n2")
    a("s_lshl_b32 %s, %s, 5", s(sT0), s(sROLE))
    a("s_add_u32 %s, %s, %s", s(sT0), s(sT0), s(sRB))
    a("s_mul_i32 %s, %s, %d", s(sT0), s(sT0), FSTR)
    a("s_lshl2_add_u32 %s, %s, %s", s(sT0), s(sCB), s(sT0))
    a("s_add_u32 %s, %s, 0x%x", s(sCSO), s(sT0), FLG_OFF)
    a("s_cmp_ge_u32 %s, 14", s(sCB))
    a("s_cselect_b32 %s, 0x%x, %s", s(sCSO), OOB, s(sCSO))
    lane0_off(a, 14)
    a("v_mov_b32 v12, 0x%x", LCNT)

    def publish(skip):
        a("s_mov_b64 exec, 1")
        a("ds_add_rtn_u32 v13, v12, v15")
        a("s_mov_b64 exec, -1")
        a("s_waitcnt lgkmcnt(0)")
        a("v_readfirstlane_b32 %s, v13", s(sT2))
        a("s_nop 1")
        a("s_cmp_lt_u32 %s, 3", s(sT2))
        a("s_cbranch_scc1 %s", skip)
        a("buffer_store_dword v15, v14, %s, %s offen sc1", s(SWS, 4), s(sCSO))

    xe_load(a, 208)
    a("s_waitcnt vmcnt(4)")
    stamp(a, 6)
    publish(n2)
    a("s_cmp_eq_u32 %s, 1", s(sROLE))
    a("s_cbranch_scc1 %s", n2)
    a("s_mov_b32 %s, 0x%x", s(sT0), FLG_OFF)
    spin(a, vFl, vFo, SWS, s(sT0), 1, OPT["slp"])
    a.label(n2)
    a("s_cmp_ge_u32 %s, 10", s(sCB3))
    a("s_cbranch_scc1 L_done")
    cnt_setup(a)
    a("s_lshl_b32 %s, %s, 2", s(sT0), s(sR))
    a("s_add_u32 %s, %s, %d", s(sT0), s(sT0), 4 * CEF)
    a("v_add_u32 v13, %s, %s", s(sT0), v(vC))
    a("v_add_u32 v12, %s, %s", s(sT0), v(vC2))
    a("s_barrier")
    stamp(a, 7, 10)
    stamp(a, 1, None, 2)
    slow = p3_body(a, False, regs)
    a.label("L_done")
    stamp(a, 9)
    stamp_flush(a, 6)
    a("s_endpgm")
    emit_slow(a, slow)

    a.label("L_aux")
    a.c("---------------- phase 3, aux waves: row tile 2, K half lw&1, group parity lw>>1; refill LDS from registers")
    stamp(a, 5)
    a("s_add_u32 %s, %s, 2", s(sRT), s(sR0))
    p3_addr(a, True)
    aux_addr(a, 3)
    cnt_setup(a)
    xe_load(a, 96)
    arrive(a, (vC, C0), (vC2, C0))
    if OPT["aprio"]:
        a("s_setprio %d", OPT["aprio"])
    a("s_waitcnt vmcnt(24)")
    stamp(a, 6)
    a("s_barrier")
    stamp(a, 7, 10)
    stamp(a, 1, None, 2)
    slow = p3_body(a, True, (16, 40, 104, 72, 6, 96, 176, 144, OPT["laa"], 2))
    a("s_branch L_done")
    emit_slow(a, slow)


def spare(a):
    a.c("---------------- spare workgroup: row stats, (master: go broadcast), then phase 3")
    l1, l2, l3 = a.new("L_sp"), a.new("L_sp"), a.new("L_sp")
    a("s_waitcnt lgkmcnt(0)")
    srd(a, SX, pX, S * D * 2)
    srd(a, SDBG, pDBG, 256)
    srd(a, SWS, pWS, WS_BYTES)
    a("s_cmp_lt_u32 %s, 4", s(sW))
    a("s_cbranch_scc1 %s", l1)
    rowstats_issue(a)
    a("s_waitcnt vmcnt(1)")
    rowstats_finish(a)
    a("v_mov_b32 %s, 0", v(LvO))
    a("v_lshlrev_b32 %s, 2, v1", v(LvT))
    a("v_add_u32 %s, 0x%x, %s", v(LvT), LCNT, v(LvT))
    a("ds_write_b32 %s, %s", v(LvT), v(LvO))
    a("s_waitcnt vmcnt(0) lgkmcnt(0)")
    a("s_barrier")
    a("s_cmp_lg_u32 %s, 4", s(sW))
    a("s_cbranch_scc1 %s", l3)
    spin(a, LvF, LvO, SWS, s(sGO), 1, 16)
    a.label(l3)
    a("s_barrier")
    a("s_branch L_spare_lnext")
    a.label(l1)
    a("s_barrier")
    a("s_cmp_lg_u32 %s, 0", s(sW))
    a("s_cbranch_scc1 %s", l2)
    signal(a, 12)
    a("s_cmp_lg_u32 s2, %d", MASTER)
    a("s_cbranch_scc1 %s", l2)
    a("v_lshlrev_b32 v9, 2, v1")
    a("v_or_b32 v9, 0x80, v9")
    spin(a, 8, 9, SDBG, "0", 8, 6)
    a("v_mul_u32_u24 v9, %d, v1", FSTR)
    a("v_mov_b32 v8, 1")
    for i in range(4):
        a("s_mov_b32 %s, 0x%x", s(sT0), FLG_OFF + 128 + 64 * i * FSTR)
        a("buffer_store_dword v8, v9, %s, %s offen sc1", s(SWS, 4), s(sT0))
    a.label(l2)
    a("s_barrier")
    a("s_branch L_p3")


def kernel(a):
    a.l.append(".p2align 8")
    a.label("KERNEL")
    a("s_cmp_ge_u32 s2, 256")
    a("s_cbranch_scc1 L_exit")
    stamp(a, 0)
    a("s_load_dwordx16 s[4:19], s[0:1], 0")
    a("s_load_dwordx4 s[20:23], s[0:1], 64")
    a("v_lshrrev_b32 v1, 6, v0")
    a("s_and_b32 %s, s2, 7", s(sT0))
    a("v_readfirstlane_b32 %s, v1", s(sW))
    a("v_and_b32 v1, 63, v0")
    a("s_lshr_b32 %s, s2, 3", s(sT1))
    if OPT["pfcode"]:
        a("s_cmp_lg_u32 %s, 3", s(sW))
        a("s_cbranch_scc1 L_nopf")
        a("s_getpc_b64 %s", s(sT2, 2))
        a.label("L_pc")
        a("s_sub_u32 %s, %s, L_pc-KERNEL", s(sT2), s(sT2))
        a("s_subb_u32 %s, %s, 0", s(sT3), s(sT3))
        a("s_and_b32 %s, %s, 7", s(sKA), s(sT1))
        a("s_lshl_b32 %s, %s, 13", s(sKA), s(sKA))
        a("v_lshl_add_u32 v2, v1, 7, %s", s(sKA))
        a("v_min_u32 v2, L_text_end-KERNEL-4, v2")
        a("v_mov_b32 v3, %s", s(sT3))
        a("v_add_co_u32 v2, vcc, %s, v2", s(sT2))
        a("s_nop 1")
        a("v_addc_co_u32 v3, vcc, 0, v3, vcc")
        a("global_load_dword v0, v[2:3], off")
        a.label("L_nopf")
    a("s_sub_u32 %s, %s, 4", s(sLW), s(sW))
    a("s_cmp_lt_u32 %s, 12", s(sT1))
    a("s_cbranch_scc0 L_dec_ffn")
    a("s_mov_b32 %s, %s", s(sCB), s(sT0))
    a("s_mov_b32 %s, %s", s(sRB), s(sT1))
    a("s_mul_i32 %s, %s, %d", s(sROW0), s(sRB), U)
    a("s_max_u32 %s, %s, 14", s(sROW0), s(sROW0))
    a("s_sub_u32 %s, %s, 14", s(sROW0), s(sROW0))
    a("s_mov_b32 %s, 1", s(sROLE))
    if OPT["part"] == 1:
        a("s_mov_b32 %s, %s", s(sCB3), s(sT1))
        a("s_lshl3_add_u32 %s, %s, 6", s(sR0), s(sT0))
    else:
        a("s_cmp_ge_u32 %s, 5", s(sT1))
        a("s_cselect_b32 %s, 5, 0", s(sT2))
        a("s_cselect_b32 %s, 14, 12", s(sR0))
        a("s_sub_u32 %s, %s, %s", s(sCB3), s(sT1), s(sT2))
        a("s_lshr_b32 %s, %s, 1", s(sT2), s(sT0))
        a("s_lshl4_add_u32 %s, %s, %s", s(sR0), s(sT2), s(sR0))
        a("s_and_b32 %s, %s, 1", s(sT2), s(sT0))
        a("s_mul_i32 %s, %s, 5", s(sT2), s(sT2))
        a("s_add_u32 %s, %s, %s", s(sCB3), s(sCB3), s(sT2))
        a("s_cmp_ge_u32 %s, 10", s(sT1))
        a("s_cselect_b32 %s, 10, %s", s(sCB3), s(sCB3))
    a("s_cmp_lt_u32 %s, 4", s(sW))
    a("s_cbranch_scc1 L_qkv_compute")
    a("s_branch L_qkv_lsetup")
    a.label("L_dec_ffn")
    a("s_sub_u32 %s, %s, 12", s(sT1), s(sT1))
    if OPT["part"] == 1:
        a("s_cmp_ge_u32 %s, 10", s(sT1))
        a("s_cselect_b32 %s, 10, 0", s(sT2))
        a("s_cselect_b32 %s, 3, 0", s(sR0))
        a("s_sub_u32 %s, %s, %s", s(sCB3), s(sT1), s(sT2))
        a("s_lshl3_add_u32 %s, %s, %s", s(sR0), s(sT0), s(sR0))
    else:
        a("s_mul_i32 %s, %s, 52", s(sT2), s(sT1))
        a("s_lshr_b32 %s, %s, 8", s(sT2), s(sT2))
        a("s_mul_i32 %s, %s, 3", s(sR0), s(sT2))
        a("s_mul_i32 %s, %s, 5", s(sT2), s(sT2))
        a("s_sub_u32 %s, %s, %s", s(sCB3), s(sT1), s(sT2))
        a("s_lshr_b32 %s, %s, 1", s(sT2), s(sT0))
        a("s_lshl4_add_u32 %s, %s, %s", s(sR0), s(sT2), s(sR0))
        a("s_and_b32 %s, %s, 1", s(sT2), s(sT0))
        a("s_mul_i32 %s, %s, 5", s(sT2), s(sT2))
        a("s_add_u32 %s, %s, %s", s(sCB3), s(sCB3), s(sT2))
    a("s_lshl3_add_u32 %s, %s, %s", s(sT2), s(sT1), s(sT0))
    a("s_sub_u32 %s, %s, 1", s(sT2), s(sT2))
    a("s_mul_i32 %s, %s, 18", s(sT0), s(sT0))
    a("s_add_u32 %s, %s, %s", s(sT0), s(sT0), s(sT1))
    a("s_cmp_eq_u32 %s, 143", s(sT0))
    a("s_cselect_b32 %s, 200, %s", s(sT0), s(sT0))
    a("s_cmp_lt_u32 %s, 18", s(sT1))
    a("s_cselect_b32 %s, %s, %s", s(sT0), s(sT0), s(sT2))
    a("s_mul_i32 %s, %s, 5958", s(sCB), s(sT0))
    a("s_lshr_b32 %s, %s, 16", s(sCB), s(sCB))
    a("s_mul_i32 %s, %s, 11", s(sRB), s(sCB))
    a("s_sub_u32 %s, %s, %s", s(sRB), s(sT0), s(sRB))
    a("s_mul_i32 %s, %s, 192", s(sROW0), s(sRB))
    a("s_mov_b32 %s, 0", s(sROLE))
    a("s_cmp_ge_u32 %s, 154", s(sT0))
    a("s_cbranch_scc1 L_spare")
    a("s_cmp_lt_u32 %s, 4", s(sW))
    a("s_cbranch_scc1 L_ffn_compute")
    ffn_loader_setup(a)
    a.label("L_qkv_lsetup")
    qkv_loader_setup(a)
    loader(a)
    sig = (OPT["cs_h"] + 7 + 1) // 2
    a.label("L_ffn_compute")
    a("s_cmp_eq_u32 %s, 3", s(sW))
    a("s_cselect_b32 %s, %d, 9", s(sSIG), sig)
    ffn_compute(a)
    phase3(a)
    a.label("L_qkv_compute")
    a("s_cmp_eq_u32 %s, 3", s(sW))
    a("s_cselect_b32 %s, %d, 9", s(sSIG), sig)
    qkv_compute(a)
    a.label("L_spare")
    spare(a)
    a.label("L_exit")
    a("s_endpgm")
    a.label("L_text_end")


HEADER = """; Fused LayerNorm + local dilated attention + SwiGLU FFN, one launch (generated by dev/gen7.py)
; @launch grid=(256,1,1) block=(512,1,1) lds=163840
.amdgcn_target "amdgcn-amd-amdhsa--gfx950"
.text
"""

KD = """.amdhsa_kernel %s
  .amdhsa_next_free_vgpr 256
  .amdhsa_next_free_sgpr 102
  .amdhsa_accum_offset 256
  .amdhsa_group_segment_fixed_size 0
  .amdhsa_kernarg_size 80
  .amdhsa_user_sgpr_count 2
  .amdhsa_user_sgpr_kernarg_segment_ptr 1
  .amdhsa_system_sgpr_workgroup_id_x 1
  .amdhsa_float_denorm_mode_32 3
.end_amdhsa_kernel
"""


def build():
    a = Asm()
    a.l.append(".globl KERNEL")
    a.l.append(".type KERNEL,@function")
    kernel(a)
    out = HEADER + a.text()
    out += '.section .rodata,"a"\n.p2align 6\n' + KD % "KERNEL"
    return out.replace("KERNEL", NAME + "_kernel")


if __name__ == "__main__":
    outp = "cdna_kernels/%s.s" % NAME
    for arg in sys.argv[1:]:
        if arg.startswith("-o"):
            outp = arg[2:]
        elif "=" in arg:
            k, val = arg.split("=")
            OPT[k] = eval(val)
    open(outp, "w").write(build())
    print("wrote", outp)
```

```python
import sys, struct

NAME = "recurrent_scan__sliding_local_dilated__swiglu_ffn__prompt"
OPT = dict(stamps=False, stampset=0, rot=0, noflag=False, cs_h=0, pfcode=True, pfw2=True, pfw2_h=8, k2rot=0,
           la=10, pfwo=True, early=True, thr=160, slp=1, fst=0, lw=3, la3=10, spf=(0, 0), stb=(0, 1, 2, 3, 4, 5), lprio=0, sppf=0, stg=[3, 3, 3, 1, 1, 1, 2, 2, 2, 2, 3, 3], rsh=1, late=1, o_pre=20, o_pace=2, qlate=0, wrate=0.45, wrate2=0.5, sprioq=1, touchq=1, pfsel=0, jprio=0, rsi=-1, sprio=0, ogc=1, wcost=14, lcost=10, bud=26, ckd=2, bgf=1, ssl=1, ssl2=0, ostf="sc1", laa=5, qpace=0, ogate=2, aprio=0, part=1, touch=0, own=4, instage=0, wsk=1, wper=4)

S, D, F = 2048, 640, 1728
NKG = 148
ACT_OFF = 0x1000
STATS_OFF = 0xA00000
COLS_OFF = 0xA10000
STAMP_OFF = 0xA60000
SBUF_OFF = 0xB00000
FLG_OFF = 0xE00000
FSTR = 4352
WS_BYTES = 0xF20000
U = 176
LOG2E = 1.4426950408889634
OOB = 0x40000000
MASTER = 255

A_SLOT, B_BASE, B_SLOT, STAT = 24576, 73728, 16384, 155648
KV_SG = 3328
KV_S = 4 * KV_SG
D_KH, D_REG = 77824, 36864

pX, pQ, pWO, pG, pU, pWD, pOUT, pDBG, pWS = 4, 6, 8, 12, 14, 16, 18, 20, 22
SX, SWS, SDBG, SB0, SB1, SCS = 24, 28, 32, 36, 40, 44
SW3, SOUT, SWO = SCS, SB1, 76
sSPIN = 3
sW, sRB, sCB, sLW = 48, 49, 50, 51
sT0, sT1, sT2, sT3 = 52, 53, 54, 55
sKA, sKB, sMA, sMB = 56, 57, 58, 59
sCNT, sDA, sDB, sAS = 60, 61, 62, 63
sROW0, sSIG = 64, 65
sINCB, sLIMB, sROLE, sCSO, sCSD, sSTR = 66, 67, 68, 69, 70, 71
sCOL0, sRB3, sCB3, sGO = 72, 73, 74, 75
sR, sKH, sRW, sRX, sLD, sXB, sXO, sRT = sLIMB, sAS, sCNT, sDA, sDB, sMA, sSIG, sINCB
sR0 = sRB3
sST, NST = 80, 10
sPAR = sSTR
LCNT = STAT + 3072


def f2u(x):
    return struct.unpack("<I", struct.pack("<f", x))[0]


class Asm:
    def __init__(self):
        self.l = []
        self.nlab = 0

    def __call__(self, fmt, *args):
        self.l.append("    " + (fmt % args if args else fmt))

    def label(self, s_):
        self.l.append(s_ + ":")

    def new(self, p="L"):
        self.nlab += 1
        return "%s_%d" % (p, self.nlab)

    def c(self, s_):
        self.l.append("    ; " + s_)

    def text(self):
        return "\n".join(self.l) + "\n"


def v(i, n=1):
    return "v%d" % i if n == 1 else "v[%d:%d]" % (i, i + n - 1)


def s(i, n=1):
    return "s%d" % i if n == 1 else "s[%d:%d]" % (i, i + n - 1)


def srd(a, d, base, nbytes):
    a("s_mov_b32 %s, %s", s(d), s(base))
    a("s_and_b32 %s, %s, 0xffff", s(d + 1), s(base + 1))
    a("s_mov_b32 %s, 0x%x", s(d + 2), nbytes)
    a("s_mov_b32 %s, 0x20000", s(d + 3))


def stamp(a, idx, cyc=None, set_=0):
    if not OPT["stamps"]:
        return
    if OPT["stampset"] >= 2:
        if set_ == OPT["stampset"] or idx in (0, 9):
            a("s_memrealtime %s", s(sST + 2 * idx, 2))
        return
    if set_ >= 2:
        return
    if idx in (5, 6, 7, 8) and set_ != OPT["stampset"]:
        return
    if OPT.get("cyc") and idx in (1, 2):
        return
    a("s_memrealtime %s", s(sST + 2 * idx, 2))
    if cyc is not None and OPT.get("cyc"):
        a("s_memtime %s", s(sST + 2 * (cyc - 9), 2))


def stamp_flush(a, vt):
    if not OPT["stamps"]:
        return
    a("s_waitcnt lgkmcnt(0)")
    if OPT.get("dbgstamp"):
        sk = a.new("L_nds")
        a("s_cmp_lg_u32 %s, 0", s(sW))
        a("s_cbranch_scc1 %s", sk)
        a("s_cmp_ge_u32 %s, 13", s(sCB))
        a("s_cbranch_scc1 %s", sk)
        a("s_cmp_ge_u32 %s, 10", s(sCB3))
        a("s_cbranch_scc1 %s", sk)
        srd(a, SDBG, pDBG, 256)
        a("s_not_b32 %s, %s", s(sST + 2), s(sST))
        a("v_mov_b32 %s, 0", v(vt + 1))
        for i in range(NST):
            a("v_writelane_b32 %s, %s, %d", v(vt + 1), s(sST + 2 * i), i)
        a("v_lshlrev_b32 %s, 2, v1", v(vt))
        a("s_mov_b64 exec, 0x3ff")
        a("buffer_atomic_umax %s, %s, %s, 0 offen sc1", v(vt + 1), v(vt), s(SDBG, 4))
        a.label(sk)
        return
    a("s_lshl_b32 %s, s2, 3", s(sT0))
    a("s_add_u32 %s, %s, %s", s(sT0), s(sT0), s(sW))
    a("s_lshl_b32 %s, %s, 6", s(sT0), s(sT0))
    a("s_add_u32 %s, %s, 0x%x", s(sT0), s(sT0), STAMP_OFF)
    a("v_mov_b32 %s, 0", v(vt))
    for i in range(NST):
        a("v_mov_b32 %s, %s", v(vt + 1), s(sST + 2 * i))
        a("buffer_store_dword %s, %s, %s, %s offen offset:%d", v(vt + 1), v(vt), s(SWS, 4), s(sT0), 4 * i)
        a("s_nop 1")


def wrap_add(a, reg, inc, lim):
    a("s_add_u32 %s, %s, 0x%x", s(reg), s(reg), inc)
    a("s_cmp_ge_u32 %s, 0x%x", s(reg), lim)
    a("s_cselect_b32 %s, 0, %s", s(reg), s(reg))


def dma(a, m0base, m0imm, voff, srdreg, soff, imm=0):
    a("s_add_u32 m0, %s, 0x%x", s(m0base), m0imm - imm)
    a("s_nop 0")
    o = " offset:%d" % imm if imm else ""
    a("buffer_load_dwordx4 %s, %s, %s offen%s lds", v(voff), s(srdreg, 4), s(soff), o)


def bf16_round(a, r):
    a("v_cvt_pk_bf16_f32 %s, %s, %s", v(r), v(r), v(r))
    a("v_and_b32 %s, 0xffff0000, %s", v(r), v(r))


def lane0_off(a, vT):
    a("v_cmp_eq_u32 vcc, 0, v1")
    a("v_mov_b32 %s, 0x%x", v(vT + 1), OOB)
    a("v_mov_b32 %s, 0", v(vT))
    a("v_cndmask_b32 %s, %s, %s, vcc", v(vT), v(vT + 1), v(vT))
    a("v_mov_b32 %s, 1", v(vT + 1))


def signal(a, vT):
    lane0_off(a, vT)
    a("s_lshr_b32 %s, s2, 3", s(sT2))
    a("s_lshl2_add_u32 %s, %s, 128", s(sT2), s(sT2))
    a("buffer_atomic_add %s, %s, %s, %s offen sc1", v(vT + 1), v(vT), s(SDBG, 4), s(sT2))


def set_flag(a, vT, soff):
    lane0_off(a, vT)
    a("s_waitcnt vmcnt(0)")
    a("buffer_store_dword %s, %s, %s, %s offen sc1", v(vT + 1), v(vT), s(SWS, 4), s(soff))


def spin(a, vF, vO, srdreg, soff, val, sleep, first_loaded=False):
    if OPT["noflag"]:
        return
    ok, lp, chk = a.new("L_sok"), a.new("L_ssp"), a.new("L_sck")
    a("s_mov_b32 %s, 0x40000", s(sSPIN))
    if first_loaded:
        a("s_branch %s", chk)
    a.label(lp)
    a("buffer_load_dword %s, %s, %s, %s offen sc1", v(vF), v(vO), s(srdreg, 4), soff)
    a("s_waitcnt vmcnt(0)")
    a.label(chk)
    a("v_cmp_gt_u32 vcc, %d, %s", val, v(vF))
    a("s_nop 1")
    a("s_cmp_eq_u64 vcc, 0")
    a("s_cbranch_scc1 %s", ok)
    a("s_sleep %d", sleep)
    a("s_sub_u32 %s, %s, 1", s(sSPIN), s(sSPIN))
    a("s_cbranch_scc0 %s", lp)
    a.label(ok)


class Loop:
    def __init__(self, cyc):
        self.ev = []
        self.cyc = cyc

    def rd(self, tag, text):
        self.ev.append(("rd", tag, text))

    def mfma(self, text, needs):
        self.ev.append(("mf", text, needs))

    def txt(self, text):
        self.ev.append(("txt", text))

    def barrier(self):
        self.ev.append(("bar",))

    def tail_reads(self):
        last = max(i for i, e in enumerate(self.ev) if e[0] == "bar")
        return [e for e in self.ev[last:] if e[0] == "rd"]

    def emit(self, a, last_iter=None):
        reads = []
        t = 0
        last = max(i for i, e in enumerate(self.ev) if e[0] == "bar")
        for e in self.ev[last:]:
            if e[0] == "rd":
                reads.append((e[1], t))
            elif e[0] == "mf":
                t += self.cyc
        conf = -1
        for n_, e in enumerate(self.ev):
            if last_iter and (e[0] == "txt" or (e[0] == "rd" and n_ > last)):
                continue
            if last_iter and e[0] == "bar":
                if n_ == last:
                    last_iter()
                    reads.append((("ARR",), t))
                continue
            if e[0] == "rd":
                a(e[2])
                reads.append((e[1], t))
            elif e[0] == "txt":
                a(e[1])
            elif e[0] == "bar":
                a("s_waitcnt lgkmcnt(0)")
                a("s_barrier")
                conf = len(reads) - 1
            else:
                need = -1
                for tag in e[2]:
                    idx = [i for i, r in enumerate(reads) if r[0] == tag]
                    if idx:
                        need = max(need, idx[-1])
                if need > conf:
                    old = [i for i, r in enumerate(reads) if r[1] <= t - OPT["thr"]]
                    if old:
                        need = max(need, old[-1])
                    n = len(reads) - 1 - need
                    if n > 15:
                        n = 15
                        need = len(reads) - 16
                    a("s_waitcnt lgkmcnt(%d)", n)
                    conf = need
                a(e[1])
                t += self.cyc


LvOA = [2, 3, 4, 5, 6, 7]
LvOB = [8, 9, 10, 11]
LvT, LvT2, LvT3, LvT4, LvF, LvO = 12, 13, 14, 15, 16, 17
LvSL, LvCO, LvCS, LvRO = 18, 19, 20, 21
LCS = 24
LAC = 56
LUP = 64
LXR = 84
PvWD = 23


def rowstats_issue(a):
    vT, vT2 = LvT, LvT2
    a("s_lshl_b32 %s, s2, 3", s(sT2))
    a("s_lshl1_add_u32 %s, %s, %s", s(sT2), s(sLW), s(sT2))
    a("v_lshrrev_b32 %s, 5, v1", v(LvRO))
    a("v_add_u32 %s, %s, %s", v(LvRO), s(sT2), v(LvRO))
    a("v_mul_u32_u24 %s, 1280, %s", v(vT), v(LvRO))
    a("v_and_b32 %s, 31, v1", v(vT2))
    a("v_lshl_add_u32 %s, %s, 3, %s", v(LvF), v(vT2), v(vT))
    a("v_lshl_add_u32 %s, %s, 4, %s", v(vT), v(vT2), v(vT))
    a("buffer_load_dwordx4 %s, %s, %s, 0 offen", v(LXR, 4), v(vT), s(SX, 4))
    a("buffer_load_dwordx4 %s, %s, %s, 0 offen offset:512", v(LXR + 4, 4), v(vT), s(SX, 4))
    a("buffer_load_dwordx2 %s, %s, %s, 0 offen offset:1024", v(LXR + 8, 2), v(LvF), s(SX, 4))
    a("v_cmp_gt_u32 vcc, 32, v1")
    a("v_lshlrev_b32 %s, 2, v1", v(vT))
    a("v_mov_b32 %s, 0x%x", v(vT2), OOB)
    a("v_cndmask_b32 %s, %s, %s, vcc", v(vT), v(vT2), v(vT))
    a("s_mul_i32 %s, s2, %d", s(sGO), FSTR)
    a("s_add_u32 %s, %s, 0x%x", s(sGO), s(sGO), FLG_OFF)
    a("s_lshl_b32 %s, %s, 7", s(sT2), s(sLW))
    a("s_add_u32 %s, %s, %s", s(sT2), s(sT2), s(sGO))
    a("v_mov_b32 %s, 0", v(vT2))
    a("buffer_store_dword %s, %s, %s, %s offen sc1", v(vT2), v(vT), s(SWS, 4), s(sT2))
    a("s_add_u32 %s, %s, 128", s(sGO), s(sGO))


def red32(a, r, t):
    for sh in (8, 4, 2, 1):
        a("s_nop 1")
        a("v_add_f32_dpp %s, %s, %s row_ror:%d row_mask:0xf bank_mask:0xf", v(r), v(r), v(r), sh)
    a("v_mov_b32 %s, %s", v(t), v(r))
    a("s_nop 1")
    a("v_permlane16_swap_b32 %s, %s", v(r), v(t))
    a("s_nop 0")
    a("v_add_f32 %s, %s, %s", v(r), v(r), v(t))


def rowstats_finish(a):
    UP, vSum, vSq, vT = LUP, LXR, LXR + 2, LvT
    for i in range(10):
        a("v_lshlrev_b32 %s, 16, %s", v(UP + 2 * i), v(LXR + i))
        a("v_and_b32 %s, 0xffff0000, %s", v(UP + 2 * i + 1), v(LXR + i))
    a("v_pk_add_f32 %s, %s, %s", v(vSum, 2), v(UP, 2), v(UP + 2, 2))
    a("v_pk_add_f32 %s, %s, %s", v(vSq, 2), v(UP + 4, 2), v(UP + 6, 2))
    for i in range(4, 10, 2):
        a("v_pk_add_f32 %s, %s, %s", v(vSum, 2), v(vSum, 2), v(UP + 2 * i, 2))
        a("v_pk_add_f32 %s, %s, %s", v(vSq, 2), v(vSq, 2), v(UP + 2 * i + 2, 2))
    a("v_pk_add_f32 %s, %s, %s", v(vSum, 2), v(vSum, 2), v(vSq, 2))
    a("v_add_f32 %s, %s, %s", v(vSum), v(vSum), v(vSum + 1))
    red32(a, vSum, vT)
    a("v_mul_f32 %s, 0x%x, %s", v(vSum), f2u(-1.0 / 640), v(vSum))
    for i in range(10):
        a("v_pk_add_f32 %s, %s, %s op_sel_hi:[1,0]", v(UP + 2 * i, 2), v(UP + 2 * i, 2), v(vSum, 2))
    a("v_pk_mul_f32 %s, %s, %s", v(vSq, 2), v(UP, 2), v(UP, 2))
    a("v_pk_mul_f32 %s, %s, %s", v(vSq + 2, 2), v(UP + 2, 2), v(UP + 2, 2))
    for i in range(2, 10, 2):
        a("v_pk_fma_f32 %s, %s, %s, %s", v(vSq, 2), v(UP + 2 * i, 2), v(UP + 2 * i, 2), v(vSq, 2))
        a("v_pk_fma_f32 %s, %s, %s, %s", v(vSq + 2, 2), v(UP + 2 * i + 2, 2), v(UP + 2 * i + 2, 2), v(vSq + 2, 2))
    a("v_pk_add_f32 %s, %s, %s", v(vSq, 2), v(vSq, 2), v(vSq + 2, 2))
    a("v_add_f32 %s, %s, %s", v(vSq), v(vSq), v(vSq + 1))
    red32(a, vSq, vT)
    a("v_mul_f32 %s, 0x%x, %s", v(vSq), f2u(1.0 / 640), v(vSq))
    bf16_round(a, vSq)
    a("v_add_f32 %s, 0x%x, %s", v(vSq), f2u(1e-5), v(vSq))
    bf16_round(a, vSq)
    a("v_sqrt_f32 %s, %s", v(vSq), v(vSq))
    a("v_lshlrev_b32 %s, 3, %s", v(LvRO), v(LvRO))
    bf16_round(a, vSq)
    a("v_rcp_f32 %s, %s", v(vSum + 1), v(vSq))
    bf16_round(a, vSum)
    a("v_and_b32 %s, 31, v1", v(vT))
    a("v_cmp_eq_u32 vcc, 0, %s", v(vT))
    a("v_mov_b32 %s, 0x%x", v(vT), OOB)
    a("s_mov_b32 %s, 0x%x", s(sT2), STATS_OFF)
    a("v_cndmask_b32 %s, %s, %s, vcc", v(LvRO), v(vT), v(LvRO))
    a("buffer_store_dwordx2 %s, %s, %s, %s offen sc1", v(vSum, 2), v(LvRO), s(SWS, 4), s(sT2))


def rot_calc(a, stride):
    r = OPT["rot"]
    if r == 0:
        a("s_mov_b32 %s, 0", s(sT0))
    elif r == 1:
        a("s_mul_i32 %s, %s, 3", s(sT0), s(sCB))
        a("s_add_u32 %s, %s, %s", s(sT0), s(sT0), s(sRB))
        a("s_mul_i32 %s, %s, 6554", s(sT1), s(sT0))
        a("s_lshr_b32 %s, %s, 16", s(sT1), s(sT1))
        a("s_mul_i32 %s, %s, 10", s(sT1), s(sT1))
        a("s_sub_u32 %s, %s, %s", s(sT0), s(sT0), s(sT1))
    else:
        a("s_add_u32 %s, %s, %s", s(sT0), s(sCB), s(sRB))
        a("s_mul_i32 %s, %s, %d", s(sT1), s(sT0), 65536 // r + 1)
        a("s_lshr_b32 %s, %s, 16", s(sT1), s(sT1))
        a("s_mul_i32 %s, %s, %d", s(sT1), s(sT1), r)
        a("s_sub_u32 %s, %s, %s", s(sT0), s(sT0), s(sT1))
        a("s_mul_i32 %s, %s, 10", s(sT0), s(sT0))
        a("s_mul_i32 %s, %s, %d", s(sT0), s(sT0), 65536 // r + 1)
        a("s_lshr_b32 %s, %s, 16", s(sT0), s(sT0))
    a("s_lshl_b32 %s, %s, 7", s(sKA), s(sT0))
    a("s_mul_i32 %s, %s, %d", s(sKB), s(sT0), 64 * stride)
    a("s_mov_b32 %s, %d", s(sINCB), 32 * stride)
    a("s_mov_b32 %s, %d", s(sLIMB), 640 * stride)
    a("s_mov_b32 %s, %d", s(sSTR), 8 * stride)


def ffn_loader_setup(a):
    a.c("---------------- FFN loader setup")
    vT, vT2, vT3, vT4 = LvT, LvT2, LvT3, LvT4
    a("v_lshrrev_b32 %s, 3, v1", v(vT))
    a("v_and_b32 %s, 7, v1", v(vT3))
    a("s_mul_i32 %s, %s, 48", s(sT0), s(sLW))
    a("s_add_u32 %s, %s, %s", s(sT0), s(sT0), s(sROW0))
    a("v_add_u32 %s, %s, %s", v(vT2), s(sT0), v(vT))
    a("v_mul_u32_u24 %s, 1280, %s", v(vT2), v(vT2))
    a("v_lshrrev_b32 %s, 4, v1", v(vT4))
    a("v_xor_b32 %s, %s, %s", v(vT4), v(vT4), v(vT3))
    a("v_lshl_add_u32 %s, %s, 4, %s", v(LvOA[0]), v(vT4), v(vT2))
    a("v_xor_b32 %s, 4, %s", v(vT4), v(vT4))
    a("v_lshl_add_u32 %s, %s, 4, %s", v(LvOA[1]), v(vT4), v(vT2))
    a("v_add_u32 %s, %d, %s", v(LvOA[1]), 8 * 1280, v(LvOA[1]))
    for ii in range(2, 6):
        a("v_add_u32 %s, %d, %s", v(LvOA[ii]), 16 * 1280 * (ii >> 1), v(LvOA[ii & 1]))
    rot_calc(a, 3456)
    a("s_mul_i32 %s, %s, 6144", s(sMA), s(sLW))
    a("s_waitcnt lgkmcnt(0)")
    srd(a, SX, pX, S * D * 2)
    for ii in range(6):
        dma(a, sMA, ii * 1024, LvOA[ii], SX, sKA)
    a("s_lshl_b32 %s, %s, 3", s(sT0), s(sLW))
    a("v_add_u32 %s, %s, %s", v(vT2), s(sT0), v(vT))
    a("v_mul_u32_u24 %s, 3456, %s", v(vT2), v(vT2))
    a("v_bfe_u32 %s, v1, 4, 1", v(vT4))
    a("v_lshlrev_b32 %s, 2, %s", v(vT4), v(vT4))
    a("v_xor_b32 %s, %s, %s", v(vT4), v(vT4), v(vT3))
    a("v_lshl_add_u32 %s, %s, 4, %s", v(vT2), v(vT4), v(vT2))
    a("s_lshl_b32 %s, %s, 8", s(sT0), s(sCB))
    a("v_add_u32 %s, %s, %s", v(LvOB[0]), s(sT0), v(vT2))
    a("s_cmp_eq_u32 %s, 13", s(sCB))
    a("s_movk_i32 %s, 128", s(sT1))
    a("s_cselect_b32 %s, 0x%x, %s", s(sT1), OOB, s(sT1))
    a("v_add_u32 %s, %s, %s", v(LvOB[1]), s(sT1), v(LvOB[0]))
    a("v_mov_b32 %s, %s", v(LvOB[2]), v(LvOB[0]))
    a("v_mov_b32 %s, %s", v(LvOB[3]), v(LvOB[1]))
    srd(a, SB0, pG, D * F * 2)
    srd(a, SB1, pU, D * F * 2)
    a("s_branch L_loader")


def qkv_loader_setup(a):
    a.c("---------------- QKV loader setup")
    vT, vT2, vT3, vT4 = LvT, LvT2, LvT3, LvT4
    a("v_lshrrev_b32 %s, 4, v1", v(vT))
    a("v_mul_u32_u24 %s, 6, %s", v(vT2), v(vT))
    a("v_bfe_u32 %s, v1, 3, 1", v(vT3))
    a("s_mul_i32 %s, %s, 48", s(sT0), s(sLW))
    a("s_add_u32 %s, %s, %s", s(sT0), s(sT0), s(sROW0))
    a("v_add3_u32 %s, %s, %s, %s", v(vT2), v(vT2), v(vT3), s(sT0))
    a("v_mul_u32_u24 %s, 1280, %s", v(vT2), v(vT2))
    a("v_and_b32 %s, 7, v1", v(vT3))
    a("v_xor_b32 %s, %s, %s", v(vT3), v(vT3), v(vT))
    a("v_xor_b32 %s, 4, %s", v(vT4), v(vT3))
    a("v_lshl_add_u32 %s, %s, 4, %s", v(vT3), v(vT3), v(vT2))
    a("v_lshl_add_u32 %s, %s, 4, %s", v(vT4), v(vT4), v(vT2))
    for ii in range(6):
        t_, par = ii >> 1, ii & 1
        a("v_add_u32 %s, %d, %s", v(LvOA[ii]), (24 * par + 2 * t_) * 1280, v(vT4 if par else vT3))
    rot_calc(a, 3840)
    a("s_mul_i32 %s, %s, 6144", s(sMA), s(sLW))
    a("s_waitcnt lgkmcnt(0)")
    srd(a, SX, pX, S * D * 2)
    for ii in range(6):
        dma(a, sMA, ii * 1024, LvOA[ii], SX, sKA)
    a("s_lshl_b32 %s, %s, 6", s(sT0), s(sLW))
    a("s_mul_i32 %s, %s, 160", s(sT2), s(sCB))
    for ii in range(4):
        q = LvOB[ii]
        if ii == 0:
            a("v_add_u32 %s, %s, v1", v(LvF), s(sT0))
        else:
            a("v_add_u32 %s, 0x100, %s", v(LvF), v(LvF))
        a("v_mul_u32_u24 %s, 2185, %s", v(vT), v(LvF))
        a("v_lshrrev_b32 %s, 16, %s", v(vT), v(vT))
        a("v_mul_u32_u24 %s, 30, %s", v(vT2), v(vT))
        a("v_sub_u32 %s, %s, %s", v(vT2), v(LvF), v(vT2))
        a("v_mul_u32_u24 %s, 26, %s", v(vT3), v(vT2))
        a("v_lshrrev_b32 %s, 8, %s", v(vT3), v(vT3))
        a("v_mul_u32_u24 %s, %d, %s", v(vT3), 1280 - 160, v(vT3))
        a("v_lshl_add_u32 %s, %s, 4, %s", v(vT3), v(vT2), v(vT3))
        a("v_and_b32 %s, 12, %s", v(vT2), v(vT))
        a("v_add_u32 %s, %s, %s", v(vT2), v(vT2), v(vT))
        a("v_lshrrev_b32 %s, 4, %s", v(vT4), v(vT))
        a("v_mul_u32_u24 %s, 12, %s", v(vT4), v(vT4))
        a("v_sub_u32 %s, %s, %s", v(vT2), v(vT2), v(vT4))
        a("v_mul_u32_u24 %s, 3840, %s", v(vT2), v(vT2))
        a("v_add3_u32 %s, %s, %s, %s", v(q), v(vT2), v(vT3), s(sT2))
    a("s_cmp_eq_u32 %s, 3", s(sLW))
    a("s_cselect_b32 %s, 0x%x, 0", s(sT0), OOB)
    a("v_or_b32 %s, %s, %s", v(LvOB[3]), s(sT0), v(LvOB[3]))
    srd(a, SB0, pQ, D * 1920 * 2)
    srd(a, SB1, pQ, D * 1920 * 2)


def ffn_setup2(a):
    vT, vT3 = LvT, LvT3
    a("s_cmp_lt_u32 %s, 2", s(sLW))
    a("s_cselect_b64 %s, %s, %s", s(SCS, 2), s(SB0, 2), s(SB1, 2))
    a("s_cselect_b32 %s, 0, %d", s(sCSD), 1728 * 4)
    a("s_cselect_b32 %s, 0, %d", s(sCOL0), 1600 * 4)
    a("s_mov_b32 %s, %d", s(SCS + 2), 640 * 3456)
    a("s_and_b32 %s, %s, 1", s(sT0), s(sLW))
    a("s_lshl1_add_u32 %s, %s, %s", s(sT0), s(sCB), s(sT0))
    a("v_lshrrev_b32 %s, 3, v1", v(vT))
    a("v_mul_u32_u24 %s, 3456, %s", v(vT), v(vT))
    a("s_mul_i32 %s, %s, %d", s(sCSO), s(sRB), 64 * 3456)
    a("s_add_u32 %s, %s, %d", s(sCSD), s(sCSD), 1920 * 4)
    a("s_cmp_lt_u32 %s, 27", s(sT0))
    a("s_cselect_b32 %s, 10, 0", s(sT2))
    a("s_lshl_b32 %s, %s, 6", s(sT1), s(sLW))
    a("v_add_u32 %s, %s, v1", v(LvCO), s(sT1))
    a("v_lshlrev_b32 %s, 2, %s", v(LvCO), v(LvCO))
    a("s_lshl_b32 %s, %s, 9", s(sT1), s(sCB))
    a("s_add_u32 %s, %s, %s", s(sCOL0), s(sCOL0), s(sT1))
    a("s_add_u32 %s, %s, 0x%x", s(sCOL0), s(sCOL0), COLS_OFF + 1920 * 4)


def qkv_setup2(a):
    vT, vT3 = LvT, LvT3
    a("s_mov_b64 %s, %s", s(SCS, 2), s(SB0, 2))
    a("s_mov_b32 %s, %d", s(SCS + 2), 640 * 3840)
    a("s_mov_b32 %s, 0", s(sCSD))
    a("s_mul_i32 %s, %s, 10", s(sT0), s(sLW))
    a("s_add_u32 %s, %s, %s", s(sT0), s(sT0), s(sCB))
    a("s_lshr_b32 %s, %s, 2", s(sT1), s(sCB))
    a("s_add_u32 %s, %s, %s", s(sT0), s(sT0), s(sT1))
    a("s_mul_i32 %s, %s, 10", s(sT1), s(sCB))
    a("s_add_u32 %s, %s, 4", s(sT1), s(sT1))
    a("s_cmp_ge_u32 %s, 3", s(sCB))
    a("s_cselect_b32 %s, 25, 0", s(sT2))
    a("s_sub_u32 %s, %s, %s", s(sT1), s(sT1), s(sT2))
    a("s_cmp_lt_u32 %s, 6", s(sCB))
    a("s_cselect_b32 %s, 10, 0", s(sT2))
    a("s_cmp_lt_u32 %s, 3", s(sLW))
    a("s_cselect_b32 %s, %s, %s", s(sT0), s(sT0), s(sT1))
    a("s_cselect_b32 %s, 10, %s", s(sT2), s(sT2))
    a("v_lshrrev_b32 %s, 3, v1", v(vT))
    a("v_mul_u32_u24 %s, 3840, %s", v(vT), v(vT))
    a("s_mul_i32 %s, %s, %d", s(sCSO), s(sRB), 64 * 3840)
    a("s_lshl_b32 %s, %s, 6", s(sT1), s(sLW))
    a("v_add_u32 %s, %s, v1", v(LvCO), s(sT1))
    a("v_mul_u32_u24 %s, 820, %s", v(vT3), v(LvCO))
    a("v_lshrrev_b32 %s, 16, %s", v(vT3), v(vT3))
    a("v_mul_u32_u24 %s, 560, %s", v(vT3), v(vT3))
    a("v_add_lshl_u32 %s, %s, %s, 2", v(LvCO), v(LvCO), v(vT3))
    a("s_mul_i32 %s, %s, 320", s(sCOL0), s(sCB))
    a("s_add_u32 %s, %s, 0x%x", s(sCOL0), s(sCOL0), COLS_OFF)


def swz_chunk(a, vD, vT):
    a("v_bfe_u32 %s, v1, 4, 1", v(vD))
    a("v_lshlrev_b32 %s, 2, %s", v(vD), v(vD))
    a("v_and_b32 %s, 7, v1", v(vT))
    a("v_xor_b32 %s, %s, %s", v(vD), v(vD), v(vT))
    a("v_lshlrev_b32 %s, 4, %s", v(vD), v(vD))


def tr_lane(a, vD, vT, hfmul):
    a("v_lshrrev_b32 %s, 5, v1", v(vT))
    a("v_bfe_u32 %s, v1, 2, 2", v(vD))
    a("v_lshl_add_u32 %s, %s, %d, %s", v(vD), v(vT), {4: 2, 8: 3}[hfmul], v(vD))
    a("v_lshlrev_b32 %s, 7, %s", v(vD), v(vD))
    a("v_bfe_u32 %s, v1, 3, 1", v(vT))
    a("v_lshl_add_u32 %s, %s, 6, %s", v(vD), v(vT), v(vD))
    a("v_bfe_u32 %s, v1, 4, 1", v(vT))
    a("v_lshl_add_u32 %s, %s, 5, %s", v(vD), v(vT), v(vD))
    a("v_and_b32 %s, 3, v1", v(vT))
    a("v_lshl_add_u32 %s, %s, 3, %s", v(vD), v(vT), v(vD))


def p3_rot(a):
    if OPT["k2rot"] == 2:
        a("s_lshl1_add_u32 %s, %s, %s", s(sT0), s(sCB3), s(sR0))
        a("s_mul_i32 %s, %s, 57", s(sRW), s(sT0))
        a("s_lshr_b32 %s, %s, 9", s(sRW), s(sRW))
        a("s_mul_i32 %s, %s, 9", s(sRW), s(sRW))
        a("s_sub_u32 %s, %s, %s", s(sT0), s(sT0), s(sRW))
    elif OPT["k2rot"]:
        a("s_cmp_ge_u32 %s, 9", s(sCB3))
        a("s_cselect_b32 %s, 4, %s", s(sT0), s(sCB3))
    else:
        a("s_mov_b32 %s, 0", s(sT0))
    a("s_mul_i32 %s, %s, %d", s(sRW), s(sT0), 96 * 1280)
    a("s_mul_i32 %s, %s, 6144", s(sRX), s(sT0))


PvN, PvS, PvN2 = 20, 21, 22


def pre_setup(a):
    t2, t3 = LvT, LvT2
    srd(a, SW3, pWD, F * D * 2)
    srd(a, SWO, pWO, D * D * 2)
    swz_chunk(a, t3, t2)
    a("s_lshl_b32 %s, %s, 7", s(sT0), s(sCB3))
    a("v_add_u32 %s, %s, %s", v(t3), s(sT0), v(t3))
    a("v_lshrrev_b32 %s, 3, v1", v(t2))
    a("v_mul_u32_u24 %s, 1280, %s", v(t2), v(t2))
    a("v_add_u32 %s, %s, %s", v(PvN), v(t2), v(t3))
    a("s_mul_i32 %s, %s, %d", s(sT0), s(sLW), 24 * 1280)
    a("v_add_u32 %s, %s, %s", v(PvWD), s(sT0), v(PvN))
    a("v_lshrrev_b32 %s, 5, v1", v(t2))
    a("v_mul_u32_u24 %s, 20, %s", v(t2), v(t2))
    a("v_bfe_u32 %s, v1, 3, 2", v(PvS))
    a("v_add3_u32 %s, %s, %s, 16", v(t2), v(t2), v(PvS))
    a("v_mul_u32_u24 %s, 1280, %s", v(t2), v(t2))
    a("v_add_u32 %s, %s, %s", v(PvS), v(t2), v(t3))
    p3_rot(a)
    a("s_mul_i32 %s, %s, 3072", s(sLD), s(sLW))
    a("s_and_b32 %s, %s, 1", s(sKH), s(sLW))
    a("s_lshr_b32 %s, %s, 1", s(sPAR), s(sLW))
    a("s_mul_i32 %s, %s, %d", s(sT0), s(sKH), 320 * 1280)
    a("s_mul_i32 %s, %s, %d", s(sT2), s(sPAR), 8 * 1280)
    a("s_add_u32 %s, %s, %s", s(sT0), s(sT0), s(sT2))
    a("s_mul_i32 %s, %s, %d", s(sT2), s(sPAR), 32 * 1280)
    a("v_add_u32 %s, %s, %s", v(PvS), s(sT2), v(PvS))
    a("s_mul_i32 %s, %s, %d", s(sT1), s(sKH), 864 * 1280)
    a("s_mul_i32 %s, %s, %d", s(sT2), s(sPAR), 48 * 1280)
    a("s_add_u32 %s, %s, %s", s(sT1), s(sT1), s(sT2))
    a("s_cmp_ge_u32 %s, 10", s(sCB3))
    a("s_cselect_b32 %s, 0x%x, %s", s(sT0), OOB, s(sT0))
    a("s_cselect_b32 %s, 0x%x, %s", s(sT1), OOB, s(sT1))
    a("v_add_u32 %s, %s, %s", v(PvN2), s(sT0), v(PvN))
    a("v_add_u32 %s, %s, %s", v(PvS), s(sT0), v(PvS))
    a("v_add_u32 %s, %s, %s", v(PvN), s(sT1), v(PvN))


def chunk_off(a, c, base=None):
    a("s_add_u32 %s, %s, %d", s(sT2), s(sRW if base is None else base), c * 96 * 1280)
    a("s_cmp_ge_u32 %s, %d", s(sT2), 864 * 1280)
    a("s_cselect_b32 %s, %d, 0", s(sT3), 864 * 1280)
    a("s_sub_u32 %s, %s, %s", s(sT2), s(sT2), s(sT3))


def down_chunk(a, kh, c, issued=None):
    chunk_off(a, c)
    for ii in range(3):
        a("s_add_u32 %s, %s, %d", s(sT0), s(sT2), (864 * kh + 8 * ii) * 1280)
        dma(a, sLD, kh * D_KH + c * 12288 + ii * 1024, PvWD, SW3, sT0)
        if issued is not None:
            issued.append(("W3", 0))


STGQ, STGH, STGO = 32, 104, 176


def stage_h(a, c0, dst, cs=(0, 1, 2)):
    for c in cs:
        chunk_off(a, c0 + c)
        for i in range(6):
            a("buffer_load_dwordx4 %s, %s, %s, %s offen", v(dst + (6 * c + i) * 4, 4), v(PvN), s(SW3, 4), s(sT2))
            if i < 5:
                a("s_add_u32 %s, %s, %d", s(sT2), s(sT2), 8 * 1280)


def stage_o(a, lo=0, hi=20, pace=0):
    for k in range(lo, hi):
        if pace:
            a("s_sleep %d", pace)
        hg, i = k // 5, k % 5
        row = 80 * hg + (20 * i if i < 4 else 0)
        a("s_mov_b32 %s, %d", s(sT0), row * 1280)
        a("buffer_load_dwordx4 %s, %s, %s, %s offen", v(STGO + k * 4, 4), v(PvS if i == 4 else PvN2), s(SWO, 4), s(sT0))


def lds_free_after(kh, c):
    lo = kh * D_KH + c * 12288
    hi = lo + 12288
    spans = [(0, 24576, 20), (24576, 49152, 16), (49152, 73728, 18),
             (73728, 90112, 17), (90112, 106496, 18), (106496, 122880, 19), (122880, 139264, 20)]
    return max([16] + [b for x, y, b in spans if lo < y and hi > x])


def lds_arrive(a, vA_, vD, word):
    a("v_mov_b32 %s, 0x%x", v(vA_), LCNT + 4 * word)
    a("v_mov_b32 %s, 1", v(vD))
    a("s_mov_b64 exec, 1")
    a("ds_add_u32 %s, %s", v(vA_), v(vD))
    a("s_mov_b64 exec, -1")


def lds_wait(a, vA_, vD, sleep=0, n=4):
    lp, ex = a.new("L_lw"), a.new("L_lx")
    a("s_mov_b32 s100, 0x400000")
    a.label(lp)
    if sleep:
        a("s_sleep %d", sleep)
    a("ds_read_b32 %s, %s", v(vD), v(vA_))
    a("s_sub_u32 s100, s100, 1")
    a("s_cbranch_scc1 %s", ex)
    a("s_waitcnt lgkmcnt(0)")
    a("v_readfirstlane_b32 %s, %s", s(sSPIN), v(vD))
    a("s_nop 1")
    a("s_cmp_lt_u32 %s, %d", s(sSPIN), n)
    a("s_cbranch_scc1 %s", lp)
    a.label(ex)


def slot_off(a, sD, sT):
    a("s_lshr_b32 %s, %s, 3", s(sD), s(sR0))
    a("s_mul_i32 %s, %s, 3", s(sD), s(sD))
    a("s_and_b32 %s, %s, 7", s(sT), s(sR0))
    a("s_mul_i32 %s, %s, 43", s(sT), s(sT))
    a("s_lshr_b32 %s, %s, 7", s(sT), s(sT))
    a("s_add_u32 %s, %s, %s", s(sD), s(sD), s(sT))
    a("s_mul_i32 %s, %s, 10", s(sD), s(sD))
    a("s_add_u32 %s, %s, %s", s(sD), s(sD), s(sCB3))
    a("s_mul_i32 %s, %s, %d", s(sD), s(sD), FSTR)


def hflag_addr(a, vFl, vFo, nr1):
    a("s_mul_i32 %s, %s, 43", s(sT0), s(sR0))
    a("s_lshr_b32 %s, %s, 8", s(sT0), s(sT0))
    a("s_add_u32 %s, %s, %d", s(sT2), s(sR0), nr1)
    a("s_mul_i32 %s, %s, 43", s(sT2), s(sT2))
    a("s_lshr_b32 %s, %s, 8", s(sT2), s(sT2))
    a("s_sub_u32 %s, %s, %s", s(sT0), s(sT2), s(sT0))
    a("s_lshl_b32 %s, %s, 6", s(sT0), s(sT0))
    a("v_lshrrev_b32 %s, 5, v1", v(vFl))
    a("v_mul_u32_u24 %s, %s, %s", v(vFl), s(sT0), v(vFl))
    a("v_and_b32 %s, 31, v1", v(vFo))
    a("v_min_u32 %s, 13, %s", v(vFo), v(vFo))
    a("v_lshl_add_u32 %s, %s, 2, %s", v(vFo), v(vFo), v(vFl))
    slot_off(a, sT0, sT2)
    a("v_add_u32 %s, %s, %s", v(vFo), s(sT0), v(vFo))


def push_addr(a, vD, vT, vT2):
    mag = (1 << 20) // U + 1
    a("s_cmp_eq_u32 %s, 1", s(sROLE))
    a("s_cselect_b32 %s, %d, 192", s(sT0), U) if False else None
    a("s_movk_i32 %s, 192", s(sT0))
    a("s_cselect_b32 %s, %d, %s", s(sT0), U, s(sT0))
    a("s_mul_i32 %s, %s, %s", s(sT1), s(sRB), s(sT0))
    a("s_add_u32 %s, %s, %s", s(sT0), s(sT0), s(sT1))
    a("s_sub_u32 %s, %s, 1", s(sT0), s(sT0))
    a("s_min_u32 %s, %s, 2047", s(sT0), s(sT0))
    for r_ in (sT1, sT0):
        a("s_lshr_b32 %s, %s, 8", s(sT2), s(r_))
        a("s_mul_i32 %s, %s, 3", s(sT2), s(sT2))
        a("s_bfe_u32 %s, %s, 0x30005", s(r_), s(r_))
        a("s_mul_i32 %s, %s, 43", s(r_), s(r_))
        a("s_lshr_b32 %s, %s, 7", s(r_), s(r_))
        a("s_add_u32 %s, %s, %s", s(r_), s(r_), s(sT2))
    a("v_lshrrev_b32 %s, 4, v1", v(vT))
    a("v_add_u32 %s, %s, %s", v(vT), s(sT1), v(vT))
    a("v_cmp_ge_u32 vcc, %s, %s", s(sT0), v(vT))
    a("v_and_b32 %s, 15, v1", v(vT2))
    a("v_cmp_gt_u32 %s, 10, %s", s(sKA, 2), v(vT2))
    a("v_mad_u32_u24 %s, %s, 10, %s", v(vD), v(vT), v(vT2))
    a("v_mul_u32_u24 %s, %d, %s", v(vD), FSTR, v(vD))
    a("s_and_b64 vcc, vcc, %s", s(sKA, 2))
    a("v_mul_u32_u24 %s, 43, %s", v(vT2), v(vT))
    a("v_lshrrev_b32 %s, 7, %s", v(vT2), v(vT2))
    a("v_mul_u32_u24 %s, 3, %s", v(vT), v(vT))
    a("v_sub_u32 %s, %s, %s", v(vT), v(vT), v(vT2))
    a("s_cmp_eq_u32 %s, 1", s(sROLE))
    a("s_mov_b32 %s, %d", s(sT0), 43 << 12)
    a("s_cselect_b32 %s, %d, %s", s(sT0), 32 * mag, s(sT0))
    a("s_cselect_b32 %s, 5, 6", s(sT1))
    a("v_mul_u32_u24 %s, %s, %s", v(vT), s(sT0), v(vT))
    a("v_lshrrev_b32 %s, 20, %s", v(vT), v(vT))
    a("v_sub_u32 %s, %s, %s", v(vT), s(sRB), v(vT))
    a("v_lshlrev_b32 %s, %s, %s", v(vT), s(sT1), v(vT))
    a("v_add_u32 %s, %s, %s", v(vD), v(vD), v(vT))
    a("v_mov_b32 %s, 0x%x", v(vT2), OOB)
    a("v_cndmask_b32 %s, %s, %s, vcc", v(vD), v(vT2), v(vD))
    a("s_lshl_b32 %s, %s, 8", s(sT0), s(sROLE))
    a("s_lshl2_add_u32 %s, %s, %s", s(sT0), s(sCB), s(sT0))
    a("s_add_u32 %s, %s, 0x%x", s(sCSO), s(sT0), FLG_OFF)
    a("s_cmp_ge_u32 %s, 14", s(sCB))
    a("s_cselect_b32 %s, 0x%x, %s", s(sCSO), OOB, s(sCSO))


def touch(a, nr, vFl, vFo, vT):
    if not OPT["touch"]:
        return
    end = a.new("L_hg")
    hflag_addr(a, vFl, vFo, nr - 1)
    a("v_and_b32 %s, 0xffffffc0, %s", v(vFo), v(vFo))
    a("s_sub_u32 %s, %s, 1", s(sT0), s(sLW))
    a("s_cmp_ge_u32 %s, 2", s(sT0))
    a("s_cbranch_scc1 %s", end)
    a("s_mul_i32 %s, %s, 10", s(sT0), s(sT0))
    a("s_add_u32 %s, %s, %s", s(sT0), s(sT0), s(sCB3))
    a("s_cmp_ge_u32 %s, 14", s(sT0))
    a("s_cbranch_scc1 %s", end)
    a("v_lshlrev_b32 %s, 7, v1", v(vT))
    a("s_cmp_eq_u32 %s, 13", s(sT0))
    a("s_cselect_b32 %s, 0xfff, -1", s(sT1))
    a("v_and_b32 %s, %s, %s", v(vT), s(sT1), v(vT))
    a("s_lshl_b32 %s, %s, 2", s(sT2), s(sT0))
    a("s_add_u32 %s, %s, 0x%x", s(sT2), s(sT2), FLG_OFF)
    spin(a, vFl, vFo, SWS, s(sT2), 1, OPT["touch"])
    a("s_mul_i32 %s, %s, %d", s(sT2), s(sR0), NKG * 1024)
    a("s_lshl_b32 %s, %s, 13", s(sT3), s(sT0))
    a("s_add_u32 %s, %s, %s", s(sT2), s(sT2), s(sT3))
    a("s_add_u32 %s, %s, %d", s(sT2), s(sT2), ACT_OFF)
    for r in range(nr):
        a("buffer_load_dword %s, %s, %s, %s offen sc1", v(vFl), v(vT), s(SWS, 4), s(sT2))
        a("s_add_u32 %s, %s, %d", s(sT2), s(sT2), NKG * 1024)
    a.label(end)


def loader(a):
    a.label("L_loader")
    a.c("---------------- common loader")
    vT, vT2, vT3 = LvT, LvT2, LvT3
    a("s_lshl_b32 %s, %s, 10", s(sMB), s(sLW))
    if OPT["lprio"]:
        a("s_setprio %d", OPT["lprio"])
    issued = [("A", 0)] * 6

    def issueA(step, half):
        slot = step % 3
        for ii in range(3 * half, 3 * half + 3):
            dma(a, sMA, slot * A_SLOT + ii * 1024, LvOA[ii], SX, sKA)
            issued.append(("A", step))
        if half == 1:
            wrap_add(a, sKA, 128, 1280)

    def issueB(h):
        slot = h % 4
        for ii in range(4):
            dma(a, sMB, B_BASE + slot * B_SLOT + ii * 4096, LvOB[ii], SB0 if ii < 2 else SB1, sKB)
            issued.append(("B", h))
        a("s_add_u32 %s, %s, %s", s(sKB), s(sKB), s(sINCB))
        a("s_cmp_ge_u32 %s, %s", s(sKB), s(sLIMB))
        a("s_cselect_b32 %s, 0, %s", s(sKB), s(sKB))

    def wait_for(lst, *tags):
        real = [x for x in lst if x != ("F", 0)]
        last = max(i for i, x in enumerate(real) if x in tags)
        n = len(real) - 1 - last
        if ("CST", 0) in tags and OPT["stg"]:
            k = lst.index(("F", 0))
            n = min(n, len(lst) - 1 - k)
            lst.pop(k)
        a("s_waitcnt vmcnt(%d)", min(63, n))

    def setup2():
        lq, ld = a.new("L_s2q"), a.new("L_s2d")
        srd(a, SWS, pWS, WS_BYTES)
        if OPT["rsi"] < 0:
            rowstats_issue(a)
            issued.extend([("RS", 0)] * 3 + [("RST", 0)])
        a("s_cmp_eq_u32 %s, 1", s(sROLE))
        a("s_cbranch_scc1 %s", lq)
        ffn_setup2(a)
        a("s_branch %s", ld)
        a.label(lq)
        qkv_setup2(a)
        a.label(ld)
        a("s_mov_b32 %s, 0x20000", s(SCS + 3))
        a("v_and_b32 %s, 7, v1", v(vT3))
        a("v_lshl_add_u32 %s, %s, 4, %s", v(vT), v(vT3), v(vT))
        a("s_lshl_b32 %s, %s, 7", s(sT1), s(sT0))
        a("s_cmp_lt_u32 %s, %s", s(sRB), s(sT2))
        a("s_cselect_b32 %s, %s, 0x%x", s(sT1), s(sT1), OOB)
        a("v_add_u32 %s, %s, %s", v(LvCS), s(sT1), v(vT))
        a("s_lshl_b32 %s, %s, 8", s(sT0), s(sT0))
        a("s_add_u32 %s, %s, %s", s(sCSD), s(sCSD), s(sT0))
        a("s_mul_i32 %s, %s, %d", s(sT0), s(sRB), 5376 * 4)
        a("s_add_u32 %s, %s, %s", s(sCSD), s(sCSD), s(sT0))
        a("s_add_u32 %s, %s, 0x%x", s(sCSD), s(sCSD), COLS_OFF)
        a("s_cmp_lt_u32 %s, %s", s(sRB), s(sT2))
        a("s_cselect_b32 %s, %s, 0x%x", s(sCSD), s(sCSD), OOB)
        a("v_mov_b32 %s, 0", v(LvO))
        if OPT["stg"]:
            tab = OPT["stg"]
            lo = sum(tab[i] << (4 * i) for i in range(8))
            hi = sum(tab[i] << (4 * (i - 8)) for i in range(8, 12))
            a("s_mov_b32 s6, 0x%x", lo)
            a("s_mov_b32 s7, 0x%x", hi)
            a("s_lshl_b32 %s, %s, 2", s(sT0), s(sRB))
            a("s_lshr_b64 s[6:7], s[6:7], %s", s(sT0))
            a("s_and_b32 s6, s6, 15")

    def call_if(h, d, lab):
        if h - d in OPT["stg"]:
            sk = a.new("L_nc")
            a("s_cmp_lg_u32 s6, %d", h - d)
            a("s_cbranch_scc1 %s", sk)
            a("s_call_b64 s[10:11], %s", lab)
            a.label(sk)

    def cs_issue():
        for i in range(8):
            a("buffer_load_dwordx4 %s, %s, %s, %s offen", v(LCS + 4 * i, 4), v(LvCS), s(SCS, 4), s(sCSO))
            issued.append(("CS", 0))
            if i < 7:
                a("s_add_u32 %s, %s, %s", s(sCSO), s(sCSO), s(sSTR))

    def cs_reduce(part):
        if part == 0:
            if OPT["stg"]:
                a("s_waitcnt vmcnt(14)")
            else:
                wait_for(issued, ("CS", 0))
        for i in range(5 * part, 5 + 3 * part):
            dst = LAC if i == 0 else LUP
            for j in range(4):
                a("v_lshlrev_b32 %s, 16, %s", v(dst + 2 * j), v(LCS + 4 * i + j))
                a("v_and_b32 %s, 0xffff0000, %s", v(dst + 2 * j + 1), v(LCS + 4 * i + j))
            if i:
                for j in range(4):
                    a("v_pk_add_f32 %s, %s, %s", v(LAC + 2 * j, 2), v(LAC + 2 * j, 2), v(LUP + 2 * j, 2))
        if part == 0:
            return
        a("s_nop 1")
        for j in range(4):
            a("v_permlane32_swap_b32 %s, %s", v(LAC + j), v(LAC + 4 + j))
        a("s_nop 0")
        for j in range(0, 4, 2):
            a("v_pk_add_f32 %s, %s, %s", v(LAC + j, 2), v(LAC + j, 2), v(LAC + 4 + j, 2))
        a("s_nop 1")
        for j in range(2):
            a("v_permlane16_swap_b32 %s, %s", v(LAC + j), v(LAC + 2 + j))
        a("s_nop 0")
        a("v_pk_add_f32 %s, %s, %s", v(LAC, 2), v(LAC, 2), v(LAC + 2, 2))
        a("v_and_b32 %s, 7, v1", v(vT))
        a("v_lshlrev_b32 %s, 5, %s", v(vT), v(vT))
        a("v_lshrrev_b32 %s, 4, v1", v(vT2))
        a("v_lshl_add_u32 %s, %s, 3, %s", v(vT), v(vT2), v(vT))
        for j in range(2):
            a("v_add_f32_dpp %s, %s, %s row_ror:8 row_mask:0xf bank_mask:0xf", v(LAC + j), v(LAC + j), v(LAC + j))
        a("buffer_store_dwordx2 %s, %s, %s, %s offen sc1", v(LAC, 2), v(vT), s(SWS, 4), s(sCSD))
        issued.append(("CST", 0))

    def poll():
        sk = a.new("L_np")
        a("s_cmp_lg_u32 %s, 0", s(sLW))
        a("s_cbranch_scc1 %s", sk)
        a("buffer_load_dword %s, %s, %s, %s offen sc1", v(LvF), v(LvO), s(SWS, 4), s(sGO))
        a.label(sk)
        issued.append(("F", 0))

    def check(lst):
        n = len(lst) - 1 - lst.index(("F", 0))
        ok = a.new("L_fok")
        a("s_cmp_lg_u32 %s, 0", s(sLW))
        a("s_cbranch_scc1 %s", ok)
        a("s_waitcnt vmcnt(%d)", n)
        spin(a, LvF, LvO, SWS, s(sGO), 1, 2, True)
        a.label(ok)

    def stats_issue(lst):
        a("s_mov_b32 %s, %s", s(sT0), s(sCOL0))
        for k in range(10):
            a("buffer_load_dword %s, %s, %s, %s offen sc1", v(26 + k), v(LvCO), s(SWS, 4), s(sT0))
            if k < 9:
                a("s_add_u32 %s, %s, %d", s(sT0), s(sT0), 5376 * 4)
        a("s_lshl_b32 %s, %s, 6", s(sT0), s(sLW))
        a("v_add_u32 %s, %s, v1", v(vT), s(sT0))
        a("v_lshlrev_b32 %s, 3, %s", v(LvSL), v(vT))
        a("s_lshl_b32 %s, %s, 3", s(sT0), s(sROW0))
        a("s_add_u32 %s, %s, 0x%x", s(sT0), s(sT0), STATS_OFF)
        a("buffer_load_dwordx2 %s, %s, %s, %s offen sc1", v(24, 2), v(LvSL), s(SWS, 4), s(sT0))
        lst.extend([("ST", 0)] * 11)

    def stats_write(lst):
        wait_for(lst, ("ST", 0))
        for k in (2, 4, 6, 8):
            a("v_pk_add_f32 v[26:27], v[26:27], %s", v(26 + k, 2))
        a("v_add_u32 %s, 0x%x, %s", v(vT), STAT, v(LvSL))
        a("v_lshrrev_b32 %s, 1, %s", v(vT2), v(LvSL))
        a("v_add_f32 v26, v26, v27")
        a("v_add_u32 %s, 0x%x, %s", v(vT2), STAT + 2048, v(vT2))
        a("ds_write_b64 %s, %s", v(vT), v(24, 2))
        a("ds_write_b32 %s, v26", v(vT2))
        a("ds_write_b32 %s, %s offset:1024", v(vT2), v(LvO))

    def pf_w2():
        if OPT["pfsel"]:
            a("s_min_u32 %s, %s, 3", s(sT0), s(sRB))
            a("s_lshl2_add_u32 %s, %s, %s", s(sT0), s(sCB), s(sT0))
            a("s_lshl2_add_u32 %s, %s, %s", s(sT0), s(sT0), s(sLW))
            a("s_sub_u32 %s, %s, 3", s(sT1), s(sRB))
            a("s_cmp_lt_u32 %s, 7", s(sT1))
            a("s_cselect_b32 %s, 2000, %s", s(sT0), s(sT0))
            a("s_cmp_eq_u32 %s, 1", s(sROLE))
            a("s_cselect_b32 %s, 2000, %s", s(sT0), s(sT0))
            a("v_lshlrev_b32 %s, 7, v1", v(vT3))
            srd(a, SCS, pWD, F * D * 2)
            a("s_lshl_b32 %s, %s, 13", s(sT1), s(sT0))
            a("buffer_load_dword v0, %s, %s, %s offen", v(vT3), s(SCS, 4), s(sT1))
            issued.append(("PF", 0))
            a("s_add_u32 %s, %s, 224", s(sT0), s(sT0))
        else:
            a("s_lshl2_add_u32 %s, s2, %s", s(sT0), s(sLW))
            a("s_sub_u32 %s, %s, 384", s(sT0), s(sT0))
        a("s_cmp_lt_u32 %s, 270", s(sT0))
        a("s_cselect_b64 %s, %s, %s", s(SCS, 2), s(pWD, 2), s(pWO, 2))
        a("s_cselect_b32 %s, 0x%x, 0", s(SCS + 2), F * D * 2 - D * D * 2)
        a("s_cselect_b32 %s, 0, 270", s(sT2))
        a("s_add_u32 %s, %s, 0x%x", s(SCS + 2), s(SCS + 2), D * D * 2)
        a("s_and_b32 %s, %s, 0xffff", s(SCS + 1), s(SCS + 1))
        a("s_sub_u32 %s, %s, %s", s(sT0), s(sT0), s(sT2))
        a("s_min_u32 %s, %s, 1000", s(sT0), s(sT0))
        a("s_lshl_b32 %s, %s, 13", s(sT0), s(sT0))
        a("v_lshlrev_b32 %s, 7, v1", v(vT3))
        a("buffer_load_dword v0, %s, %s, %s offen", v(vT3), s(SCS, 4), s(sT0))
        issued.append(("PF", 0))

    csh = OPT["cs_h"]
    issueB(0); issueB(1)
    wrap_add(a, sKA, 128, 1280)
    setup2()
    stg = OPT["stg"]
    if stg:
        csh = 99
    if csh < 0:
        cs_issue()
    for h in range(17):
        need = [("B", h), ("A", h >> 1)]
        if h == csh + 7 or (stg and h == max(stg) + 5):
            need.append(("CST", 0))
        wait_for(issued, *need)
        a("s_barrier")
        if h % 2 == 0 and h <= 14:
            stamp(a, 1 + h // 2, None, 3)
        if h == 0:
            stamp(a, 1)
            issueA(1, 0); issueA(1, 1); issueB(2); issueB(3)
        elif h == 1:
            issueB(4); issueA(2, 0); issueA(2, 1)
        else:
            issueB(h + 3)
            if (h >> 1) + 2 <= 9:
                issueA((h >> 1) + 2, h & 1)
        if h == OPT["rsi"]:
            rowstats_issue(a)
            issued.extend([("RS", 0)] * 3 + [("RST", 0)])
        if h == csh:
            cs_issue()
        if stg:
            call_if(h, 0, "L_cs_issue")
            call_if(h, 2, "L_cs_red0")
            call_if(h, 3, "L_cs_red1")
            if h == max(stg) + 3:
                issued.append(("F", 0))
        if h == (OPT["rsh"] if csh != -1 else 4):
            wait_for(issued, ("RS", 0))
            if OPT["jprio"]:
                a("s_setprio %d", OPT["jprio"])
            rowstats_finish(a)
            if OPT["jprio"]:
                a("s_setprio 0")
            issued.append(("CST", 0))
        if h == csh + 3:
            cs_reduce(0)
        if h == csh + 4:
            cs_reduce(1)
        if OPT["pfw2"] and h == OPT["pfw2_h"]:
            pf_w2()
        sp0, spn = OPT["spf"]
        if spn and sp0 <= h < sp0 + spn:
            if h == sp0:
                a("s_lshr_b32 %s, s2, 3", s(sT0))
                a("s_lshl2_add_u32 %s, %s, %s", s(sT0), s(sT0), s(sLW))
                a("s_mul_i32 %s, %s, %d", s(sT1), s(sT0), 135 * 128)
                a("s_add_u32 s10, %s, %s", s(pWD), s(sT1))
                a("s_addc_u32 s11, %s, 0", s(pWD + 1))
                a("s_mul_i32 %s, %s, %d", s(sT1), s(sT0), 50 * 128)
                a("s_add_u32 s6, %s, %s", s(pWO), s(sT1))
                a("s_addc_u32 s7, %s, 0", s(pWO + 1))
            per = -(-185 // spn)
            for k in range(per * (h - sp0), min(185, per * (h - sp0 + 1))):
                if k < 135:
                    a("s_load_dword s101, s[10:11], %d", k * 128)
                else:
                    a("s_load_dword s101, s[6:7], %d", (k - 135) * 128)
        if h == 12 + OPT["late"]:
            poll()
        ins = OPT["instage"]
        if h == (ins or 13):
            pre_setup(a)
            if ins:
                a("s_lshl_b32 %s, %s, 30", s(sT0), s(sROLE))
                for r_ in (PvN, PvS, PvN2):
                    a("v_or_b32 %s, %s, %s", v(r_), s(sT0), v(r_))
        if ins and h >= ins:
            k_ = h - ins
            if k_ < 3:
                stage_h(a, 6, STGH, (k_,))
                issued.extend([("SG", 0)] * 6)
            elif k_ < 7:
                stage_o(a, 5 * (k_ - 3), 5 * (k_ - 2))
                issued.extend([("SG", 0)] * 5)
        if h == 14 + OPT["late"]:
            stamp(a, 2)
            check(issued)
            stamp(a, 3)
        if h == 15 + OPT["late"]:
            stats_issue(issued)
    if OPT["lprio"]:
        a("s_setprio 0")
    allc = [(kh, c) for c in range(6) for kh in range(2)]
    a("s_cmp_eq_u32 %s, 1", s(sROLE))
    a("s_cbranch_scc1 L_qkv_ltail")
    lst = list(issued)
    for kh, c in allc:
        if lds_free_after(kh, c) == 16:
            down_chunk(a, kh, c, lst)
    wait_for(lst, ("B", 17))
    a("s_barrier")
    stats_write(lst)
    wait_for(lst, ("B", 19))
    a("s_waitcnt lgkmcnt(0)")
    a("s_barrier")
    stamp(a, 4)
    for kh, c in allc:
        if lds_free_after(kh, c) in (17, 18):
            down_chunk(a, kh, c)
    if not OPT["instage"]:
        stage_h(a, 6, STGH)
    a("v_mov_b32 v2, 0x%x", LCNT + 16)
    lds_wait(a, 2, 3, 1)
    for kh, c in allc:
        if lds_free_after(kh, c) >= 19:
            down_chunk(a, kh, c)
    a.label("L_lnext")
    cnt_setup(a)
    n0 = OPT["o_pre"]
    stage_o(a, 0, min(8, n0))
    a("s_waitcnt vmcnt(%d)", min(8, n0))
    arrive(a, (vG, GH_), (vC, C0), (vC2, C0))
    stage_o(a, 8, max(8, n0))
    a("s_branch L_aux")
    a.label("L_spare_lnext")
    pre_setup(a)
    stage_h(a, 6, STGH)
    for kh, c in allc:
        down_chunk(a, kh, c)
    a("s_branch L_lnext")

    a.label("L_qkv_ltail")
    wait_for(issued, ("B", 17))
    a("s_barrier")
    stats_write(issued)
    a("s_waitcnt vmcnt(0) lgkmcnt(0)")
    a("s_barrier")
    stamp(a, 4)
    a("s_cmp_ge_u32 %s, 10", s(sRB))
    a("s_cbranch_scc1 L_done")
    if OPT["instage"]:
        for r_ in (PvN, PvS, PvN2):
            a("v_and_b32 %s, 0x3fffffff, %s", v(r_), v(r_))
    stage_h(a, 0, STGQ)
    stage_h(a, 6, STGH)
    stage_o(a)
    a("v_mov_b32 v2, 0x%x", LCNT + 16)
    lds_wait(a, 2, 3, 1)
    for c in (3, 4, 5):
        down_chunk(a, 1, c)
    aux_addr(a, 2)
    a("s_waitcnt vmcnt(0)")
    stamp(a, 6)
    cnt_setup(a)
    if OPT["touchq"]:
        touch(a, 2, 24, 25, 26)
    hflag_addr(a, 16, 17, 1)
    a("s_mov_b32 %s, 0x%x", s(sT1), FLG_OFF)
    chk_now(a, vG, 3, 4, sleep=1)
    a("buffer_load_dword v16, v17, %s, %s offen sc1", s(SWS, 4), s(sT1))
    for k in range(18):
        a("ds_write_b128 v12, %s offset:%d", v(STGQ + 4 * k, 4), (k // 6) * 12288 + (k % 6) * 1024)
    arrive(a, (vG, GH_))
    sk = a.new("L_nph")
    a("s_cmp_lg_u32 %s, 0", s(sLW))
    a("s_cbranch_scc1 %s", sk)
    a("s_waitcnt vmcnt(0)")
    spin(a, 16, 17, SWS, s(sT1), 1, OPT["slp"], True)
    arrive(a, (vG, GH_))
    a.label(sk)
    stamp(a, 5)
    for c in (3, 4, 5):
        down_chunk(a, 0, c)
    a("s_waitcnt lgkmcnt(0)")
    finish_setup(a)
    a("s_waitcnt vmcnt(3)")
    arrive(a, (vC, C0), (vC2, C0))
    refill(a, 20, OPT["sprioq"])
    stamp(a, 8)
    a("s_branch L_finish")
    if stg:
        for lab, fn in (("L_cs_issue", cs_issue), ("L_cs_red0", lambda: cs_reduce(0)), ("L_cs_red1", lambda: cs_reduce(1))):
            a.label(lab)
            if OPT["jprio"]:
                a("s_setprio %d", OPT["jprio"])
            fn()
            if OPT["jprio"]:
                a("s_setprio 0")
            a("s_setpc_b64 s[10:11]")


def loop_tail(a, loop, vT):
    a("s_cbranch_scc1 %s", loop)
    out = a.new("L_lout")
    a("s_cmp_eq_u32 %s, 9", s(sCNT))
    a("s_cbranch_scc1 %s", out)
    signal(a, vT)
    a("s_mov_b32 %s, 9", s(sSIG))
    a("s_branch %s", loop)
    a.label(out)


def ring_updates(vA, vB):
    g1 = ["s_add_u32 %s, %s, 1" % (s(sAS), s(sAS)), "s_cmp_eq_u32 %s, 3" % s(sAS)]
    g2 = ["s_cselect_b32 %s, 0x%x, %s" % (s(sDA), (-2 * A_SLOT) & 0xffffffff, s(sT3)), "s_cselect_b32 %s, 0, %s" % (s(sAS), s(sAS))]
    adds = ["v_add_u32 %s, %s, %s" % (v(r), s(sDA), v(r)) for r in vA] + ["v_add_u32 %s, %s, %s" % (v(r), s(sDB), v(r)) for r in vB]
    return g1, g2, adds, "s_sub_u32 %s, 0, %s" % (s(sDB), s(sDB))


def loop_init(a):
    a("s_mov_b32 %s, 0", s(sCNT))
    a("s_mov_b32 %s, 0", s(sAS))
    a("s_mov_b32 %s, 0x%x", s(sDB), 2 * B_SLOT)
    a("s_mov_b32 %s, 0x%x", s(sT3), A_SLOT)
    a("s_waitcnt lgkmcnt(0)")
    srd(a, SDBG, pDBG, 256)
    srd(a, SWS, pWS, WS_BYTES)
    srd(a, SX, pX, S * D * 2)


def ffn_compute(a):
    a.c("---------------- FFN compute wave: 96 tokens x (64 gate + 64 up)")
    vA, vB = [2, 3, 4, 5], [6, 7]
    XF, WF, ACC = 24, 48, 64
    vT, vT2, vT3 = 8, 9, 10

    def acc(tt, j):
        return ACC + (tt * 4 + j) * 16

    a("s_and_b32 %s, %s, 1", s(sT0), s(sW))
    a("s_lshr_b32 %s, %s, 1", s(sT1), s(sW))
    a("v_and_b32 %s, 31, v1", v(vT))
    a("s_mul_i32 %s, %s, 96", s(sT2), s(sT0))
    a("v_add_u32 %s, %s, %s", v(vT), s(sT2), v(vT))
    a("v_lshlrev_b32 %s, 7, %s", v(vT), v(vT))
    a("v_lshrrev_b32 %s, 5, v1", v(vT2))
    a("v_bfe_u32 %s, v1, 1, 3", v(vT3))
    a("v_xor_b32 %s, %s, %s", v(vT3), v(vT3), v(vT2))
    for ks in range(4):
        a("v_xor_b32 %s, %d, %s", v(vA[ks]), 2 * ks, v(vT3))
        a("v_lshl_add_u32 %s, %s, 4, %s", v(vA[ks]), v(vA[ks]), v(vT))
    tr_lane(a, vT, vT2, 8)
    a("s_lshl_b32 %s, %s, 12", s(sT2), s(sT1))
    a("s_add_u32 %s, %s, 0x%x", s(sT2), s(sT2), B_BASE)
    a("v_add_u32 %s, %s, %s", v(vB[0]), s(sT2), v(vT))
    a("v_xor_b32 %s, 64, %s", v(vB[1]), v(vB[0]))
    for i in range(0, 192, 2):
        a("v_mov_b64 %s, 0", v(ACC + i, 2))
    loop_init(a)

    def W(hh, f):
        buf = WF + (f % 4) * 4
        ks2, j = f // 4, f % 4
        off = hh * B_SLOT + (j >> 1) * 8192 + ks2 * 2048
        return [(("W", hh, f), "ds_read_b64_tr_b16 %s, %s offset:%d" % (v(buf + 2 * e, 2), v(vB[j & 1]), off + 512 * e)) for e in range(2)]

    def X(ks):
        return [(("X", ks), "ds_read_b128 %s, %s offset:%d" % (v(XF + (ks & 1) * 12 + tt * 4, 4), v(vA[ks]), tt * 4096)) for tt in range(3)]

    g1, g2, adds, neg = ring_updates(vA, vB)
    t = Loop(32)
    for hh in range(2):
        ext = {}
        for g in range(5):
            ext[3 * g] = W(hh, g + 3)
        ext[4] = X(2 * hh + 1)
        ext[18] = W(1 - hh, 0)
        ext[19] = X((2 * hh + 2) % 4)
        ext[20] = W(1 - hh, 1)
        ext[21] = W(1 - hh, 2)
        txt = {}
        if hh == 1:
            txt = {13: g1 + g2, 14: adds[:4], 15: adds[4:] + [neg],
                   22: ["s_add_u32 %s, %s, 1" % (s(sCNT), s(sCNT)), "s_cmp_lg_u32 %s, %s" % (s(sCNT), s(sSIG))]}
        for m in range(24):
            g, tt = m // 3, m % 3
            ks2, j = g // 4, g % 4
            ks = 2 * hh + ks2
            if m == 18:
                t.barrier()
            t.mfma("v_mfma_f32_32x32x16_bf16 %s, %s, %s, %s" % (
                v(acc(tt, j), 16), v(WF + (g % 4) * 4, 4), v(XF + (ks & 1) * 12 + tt * 4, 4), v(acc(tt, j), 16)),
                [("W", hh, g), ("X", ks)])
            for r_ in ext.get(m, []):
                t.rd(*r_)
            for x in txt.get(m, []):
                t.txt(x)
    stamp(a, 1)
    a("s_barrier")
    stamp(a, 2)
    for e in t.tail_reads():
        a(e[2])
    loop = a.new("L_ffn_loop")
    a.label(loop)
    t.emit(a)
    loop_tail(a, loop, 8)
    t.emit(a, lambda: (lds_arrive(a, 8, 9, 4), a("s_nop 3")))
    stamp(a, 3)
    a("s_lshl1_add_u32 %s, %s, %s", s(sT2), s(sCB), s(sT1))
    a("s_cmp_ge_u32 %s, 27", s(sT2))
    a("s_cbranch_scc1 L_ffn_next")
    vRS, vK = [2, 4, 6], [8, 10, 12]
    vCA, vSTO = 14, 15
    CG, CU, TMP = 16, 32, 48
    a("s_waitcnt lgkmcnt(0)")
    a("v_and_b32 %s, 31, v1", v(vCA))
    a("s_mul_i32 %s, %s, 96", s(sT3), s(sT0))
    a("v_add_u32 %s, %s, %s", v(vCA), s(sT3), v(vCA))
    a("v_lshlrev_b32 %s, 3, %s", v(vCA), v(vCA))
    a("v_add_u32 %s, 0x%x, %s", v(vCA), STAT, v(vCA))
    for tt in range(3):
        a("ds_read_b64 %s, %s offset:%d", v(vRS[tt], 2), v(vCA), 256 * tt)
    a("v_lshrrev_b32 %s, 5, v1", v(vCA))
    a("v_lshlrev_b32 %s, 4, %s", v(vCA), v(vCA))
    a("s_lshl_b32 %s, %s, 8", s(sT3), s(sT1))
    a("s_add_u32 %s, %s, 0x%x", s(sT3), s(sT3), STAT + 2048)
    a("v_add_u32 %s, %s, %s", v(vCA), s(sT3), v(vCA))
    a("v_lshlrev_b32 %s, 4, v1", v(vSTO))

    def rdC(hb):
        for q in range(4):
            a("ds_read_b128 %s, %s offset:%d", v(CG + 4 * q, 4), v(vCA), (32 * hb + 8 * q) * 4)
        for q in range(4):
            a("ds_read_b128 %s, %s offset:%d", v(CU + 4 * q, 4), v(vCA), 512 + (32 * hb + 8 * q) * 4)

    rdC(0)
    sBase = [sKA, sKB, sMA]
    a("s_mul_i32 %s, %s, 6", s(sDA), s(sRB))
    a("s_mul_i32 %s, %s, 3", s(sT3), s(sT0))
    a("s_add_u32 %s, %s, %s", s(sDA), s(sDA), s(sT3))
    a("s_lshl_b32 %s, %s, 12", s(sT2), s(sT2))
    a("s_add_u32 %s, %s, %d", s(sT2), s(sT2), ACT_OFF)
    for tt in range(3):
        a("s_add_u32 %s, %s, %d", s(sT3), s(sDA), tt)
        a("s_mul_i32 %s, %s, %d", s(sBase[tt]), s(sT3), NKG * 1024)
        a("s_add_u32 %s, %s, %s", s(sBase[tt]), s(sBase[tt]), s(sT2))
        a("s_cmp_lt_u32 %s, 64", s(sT3))
        a("s_cselect_b32 %s, %s, 0x%x", s(sBase[tt]), s(sBase[tt]), OOB)
    a("s_waitcnt lgkmcnt(8)")
    for tt in range(3):
        a("v_mul_f32 %s, 0x%x, %s", v(vK[tt]), f2u(-LOG2E), v(vRS[tt] + 1))
        a("v_mul_f32 %s, %s, %s", v(vK[tt] + 1), v(vRS[tt] + 1), v(vRS[tt] + 1))
        a("v_rcp_f32 %s, %s", v(vK[tt] + 1), v(vK[tt] + 1))
    pendst = []
    for hb in range(2):
        a("s_waitcnt lgkmcnt(0)")
        for tt in range(3):
            G_, U_ = acc(tt, hb), acc(tt, hb + 2)
            for i in range(0, 16, 2):
                a("v_pk_fma_f32 %s, %s, %s, %s op_sel_hi:[1,0,1]", v(G_ + i, 2), v(CG + i, 2), v(vRS[tt], 2), v(G_ + i, 2))
            for i in range(0, 16, 2):
                a("v_pk_fma_f32 %s, %s, %s, %s op_sel_hi:[1,0,1]", v(U_ + i, 2), v(CU + i, 2), v(vRS[tt], 2), v(U_ + i, 2))
            if tt == 2 and hb == 0:
                rdC(1)
            for i in range(0, 16, 2):
                a("v_pk_mul_f32 %s, %s, %s op_sel_hi:[1,0]", v(TMP + i, 2), v(G_ + i, 2), v(vK[tt], 2))
            for i in range(16):
                a("v_exp_f32 %s, %s", v(TMP + i), v(TMP + i))
            for i in range(0, 16, 2):
                a("v_pk_mul_f32 %s, %s, %s", v(G_ + i, 2), v(G_ + i, 2), v(U_ + i, 2))
            for i in range(0, 16, 2):
                a("v_pk_fma_f32 %s, %s, %s, %s op_sel:[0,1,1] op_sel_hi:[1,1,1]", v(TMP + i, 2), v(TMP + i, 2), v(vK[tt], 2), v(vK[tt], 2))
            for i in range(16):
                a("v_rcp_f32 %s, %s", v(TMP + i), v(TMP + i))
            a("s_nop 0")
            for i in range(0, 16, 2):
                a("v_pk_mul_f32 %s, %s, %s", v(G_ + i, 2), v(G_ + i, 2), v(TMP + i, 2))
            for i in range(8):
                a("v_cvt_pk_bf16_f32 %s, %s, %s", v(U_ + i), v(G_ + 2 * i), v(G_ + 2 * i + 1))
            pendst.append((U_, tt, hb * 2048))
            if 3 * hb + tt in OPT["stb"]:
                for U2, t2, o in pendst:
                    a("buffer_store_dwordx4 %s, %s, %s, %s offen offset:%d sc1", v(U2, 4), v(vSTO), s(SWS, 4), s(sBase[t2]), o)
                    a("buffer_store_dwordx4 %s, %s, %s, %s offen offset:%d sc1", v(U2 + 4, 4), v(vSTO), s(SWS, 4), s(sBase[t2]), o + 1024)
                pendst = []
    stamp(a, 4)
    a.label("L_ffn_next")


def qkv_compute(a):
    a.c("---------------- QKV compute wave: 48 tokens x 4 heads x (q,k,v)")
    vA, vB = [2, 3], 4
    vT, vT2, vT3 = 5, 6, 7
    XF, WF, ACC = 12, 36, 76

    def acc(t_, ct):
        return ACC + (t_ * 15 + ct) * 4

    a("v_and_b32 %s, 15, v1", v(vT))
    a("s_mul_i32 %s, %s, 48", s(sT0), s(sW))
    a("v_add_u32 %s, %s, %s", v(vT), s(sT0), v(vT))
    a("v_lshlrev_b32 %s, 7, %s", v(vT), v(vT))
    a("v_lshrrev_b32 %s, 4, v1", v(vT2))
    a("v_bfe_u32 %s, v1, 1, 3", v(vT3))
    a("v_xor_b32 %s, %s, %s", v(vT3), v(vT3), v(vT2))
    a("v_lshl_add_u32 %s, %s, 4, %s", v(vA[0]), v(vT3), v(vT))
    a("v_xor_b32 %s, 64, %s", v(vA[1]), v(vA[0]))
    a("v_lshrrev_b32 %s, 2, v1", v(vT))
    a("v_mul_u32_u24 %s, 480, %s", v(vT), v(vT))
    a("v_and_b32 %s, 3, v1", v(vT2))
    a("v_mul_u32_u24 %s, 40, %s", v(vT2), v(vT2))
    a("v_add_u32 %s, %s, %s", v(vB), v(vT), v(vT2))
    a("v_add_u32 %s, 0x%x, %s", v(vB), B_BASE, v(vB))
    for i in range(0, 180, 2):
        a("v_mov_b64 %s, 0", v(ACC + i, 2))
    loop_init(a)

    def W(hh, f):
        buf = WF + ((hh * 15 + f) % 10) * 4
        off = hh * B_SLOT + (f // 5) * 160 + (f % 5) * 8
        return [(("W", hh, f), "ds_read_b64_tr_b16 %s, %s offset:%d" % (v(buf + 2 * e, 2), v(vB), off + 7680 * e)) for e in range(2)]

    def X(hh):
        return [(("X", hh), "ds_read_b128 %s, %s offset:%d" % (v(XF + hh * 12 + t_ * 4, 4), v(vA[hh]), t_ * 2048)) for t_ in range(3)]

    g1, g2, adds, neg = ring_updates(vA, [vB])
    t = Loop(16)
    for hh in range(2):
        ext = {}
        q = []
        for f in range(6, 15):
            q += W(hh, f)
        for i, r_ in enumerate(q):
            ext[i] = [r_]
        q = X(1 - hh)
        for f in range(6):
            q += W(1 - hh, f)
        for i, r_ in enumerate(q):
            ext[30 + i] = [r_]
        txt = {}
        if hh == 1:
            txt = {19: g1, 20: g2, 21: adds[:2], 22: [adds[2], neg],
                   24: ["s_add_u32 %s, %s, 1" % (s(sCNT), s(sCNT)), "s_cmp_lg_u32 %s, %s" % (s(sCNT), s(sSIG))]}
        for m in range(45):
            g, t_ = m // 3, m % 3
            if m == 30:
                t.barrier()
            t.mfma("v_mfma_f32_16x16x32_bf16 %s, %s, %s, %s" % (
                v(acc(t_, g), 4), v(WF + ((hh * 15 + g) % 10) * 4, 4), v(XF + hh * 12 + t_ * 4, 4), v(acc(t_, g), 4)),
                [("W", hh, g), ("X", hh)])
            for r_ in ext.get(m, []):
                t.rd(*r_)
            for x in txt.get(m, []):
                t.txt(x)
    stamp(a, 1)
    a("s_barrier")
    stamp(a, 2)
    for e in t.tail_reads():
        a(e[2])
    loop = a.new("L_qkv_loop")
    a.label(loop)
    t.emit(a)
    loop_tail(a, loop, 6)
    t.emit(a, lambda: (lds_arrive(a, 6, 7, 4), a("s_nop 3")))
    stamp(a, 3)

    def blk(t_, mat):
        return ACC + (t_ * 15 + mat * 5) * 4

    vTok, vKV0, vKV1 = 2, 3, 4
    vRS = [6, 8, 10]
    CS = 12
    a("s_waitcnt lgkmcnt(0)")
    a("v_bfe_u32 %s, v1, 1, 3", v(vTok))
    a("v_mul_u32_u24 %s, 6, %s", v(vTok), v(vTok))
    a("v_and_b32 %s, 1, v1", v(vT))
    a("v_add3_u32 %s, %s, %s, %s", v(vTok), v(vTok), v(vT), s(sT0))
    a("v_lshlrev_b32 %s, 3, %s", v(vT), v(vTok))
    a("v_add_u32 %s, 0x%x, %s", v(vT), STAT, v(vT))
    for t_ in range(3):
        a("ds_read_b64 %s, %s offset:%d", v(vRS[t_], 2), v(vT), 16 * t_)
    a("v_lshrrev_b32 %s, 4, v1", v(72))
    a("v_mul_u32_u24 %s, 80, %s", v(vT), v(72))
    a("v_add_u32 %s, 0x%x, %s", v(vT), STAT + 2048, v(vT))
    order = [2, 1, 0]
    for mat in order:
        for tq in range(5):
            a("ds_read_b128 %s, %s offset:%d", v(CS + (mat * 5 + tq) * 4, 4), v(vT), mat * 320 + tq * 16)
    a("v_mul_u32_u24 %s, %d, %s", v(vKV0), KV_SG, v(72))
    a("v_lshl_add_u32 %s, %s, 4, %s", v(vKV0), v(vTok), v(vKV0))
    a("v_add_u32 %s, 32, %s", v(vKV0), v(vKV0))
    a("v_add_u32 %s, %d, %s", v(vKV1), 4 * KV_S, v(vKV0))

    def kvaddr(unit, srow):
        base = vKV0 if unit < 4 else vKV1
        return v(base), (unit % 4) * KV_S + (srow + 7) * 32

    c1 = (20 ** -0.5) * LOG2E

    def QS(t_):
        return blk(t_, 0) + 18

    a("v_mov_b32 v74, 0x%x", LCNT + 16)
    lds_wait(a, 74, 75)
    nz = a.new("L_nz")
    a("s_or_b32 %s, %s, %s", s(sT1), s(sRB), s(sW))
    a("s_cbranch_scc1 %s", nz)
    a("v_mul_u32_u24 v73, %d, v72", KV_SG)
    a("v_and_b32 v74, 15, v1")
    a("v_lshl_add_u32 v73, v74, 4, v73")
    a("v_add_u32 v72, %d, v73", 4 * KV_S)
    a("v_mov_b64 v[74:75], 0")
    for u_ in range(8):
        for e in range(2):
            a("ds_write_b64 %s, v[74:75] offset:%d", "v73" if u_ < 4 else "v72", (u_ % 4) * KV_S + 8 * e)
    a.label(nz)
    a("s_waitcnt lgkmcnt(0)")
    for mat in order:
        if mat == 0:
            lds_arrive(a, 72, 73, 1)
        for t_ in range(3):
            b = blk(t_, mat)
            for i in range(0, 20, 2):
                a("v_pk_fma_f32 %s, %s, %s, %s op_sel_hi:[1,0,1]", v(b + i, 2), v(CS + mat * 20 + i, 2), v(vRS[t_], 2), v(b + i, 2))
            if mat != 0:
                for i in range(0, 20, 2):
                    a("v_pk_mul_f32 %s, %s, %s op_sel:[0,1] op_sel_hi:[1,1]", v(b + i, 2), v(b + i, 2), v(vRS[t_], 2))
                    if mat == 2 and i % 4 == 2:
                        ad, off = kvaddr(3 + i // 4, t_)
                        a("ds_write_b128 %s, %s offset:%d", ad, v(b + (i // 4) * 4, 4), off)
            if mat != 2:
                for i in range(10):
                    a("v_cvt_pk_bf16_f32 %s, %s, %s", v(b + i), v(b + 2 * i), v(b + 2 * i + 1))
            if mat == 1:
                for u_, n_ in ((0, 4), (1, 4), (2, 2)):
                    ad, off = kvaddr(u_, t_)
                    a("ds_write_b%d %s, %s offset:%d", 32 * n_, ad, v(b + 4 * u_, n_), off)
            if mat == 0:
                a("v_mul_f32 %s, 0x%x, %s", v(QS(t_)), f2u(c1), v(vRS[t_] + 1))
    lds_wait(a, 72, 73)
    stamp(a, 5, None, 1)
    KH = 6
    for sr in range(-1, -8, -1):
        r0 = KH + (sr + 7) * 10
        for u_, n_ in ((0, 4), (1, 4), (2, 2)):
            ad, off = kvaddr(u_, sr)
            a("ds_read_b%d %s, %s offset:%d", 32 * n_, v(r0 + 4 * u_, n_), ad, off)

    def Lg(t_, w):
        return blk(t_, 0) + 10 + w

    def krow(sr):
        return blk(sr, 1) if sr >= 0 else KH + (sr + 7) * 10

    nread = 21
    for sr in (2, 1, 0, -1, -2, -3, -4, -5, -6, -7):
        if sr < 0:
            nread -= 3
            a("s_waitcnt lgkmcnt(%d)", min(nread, 15))
            if sr == -7:
                lds_arrive(a, 74, 75, 2)
        ts = [t_ for t_ in range(3) if 0 <= t_ - sr <= 7]
        for i in range(10):
            for t_ in ts:
                w = t_ - sr
                if i == 0:
                    a("v_dot2_f32_bf16 %s, %s, %s, 0", v(Lg(t_, w)), v(blk(t_, 0) + i), v(krow(sr) + i))
                else:
                    a("v_dot2c_f32_bf16 %s, %s, %s", v(Lg(t_, w)), v(blk(t_, 0) + i), v(krow(sr) + i))
            if i == 0:
                a("s_nop %d", 3 - len(ts))
    VH = [6, 26, 46]

    def rdV(sr, buf):
        for u_ in range(5):
            ad, off = kvaddr(3 + u_, sr)
            a("ds_read_b128 %s, %s offset:%d", v(buf + 4 * u_, 4), ad, off)

    stamp(a, 6, None, 1)
    rdV(-1, VH[0]); rdV(-2, VH[1]); rdV(-3, VH[2])
    skip = a.new("L_nomask")
    a("s_cmp_lg_u32 %s, 0", s(sRB))
    a("s_cbranch_scc1 %s", skip)
    a("v_mov_b32 %s, 0x%x", v(70), f2u(-1e30))
    for t_ in range(3):
        for w in range(t_ + 1, 8):
            a("v_cmp_le_u32 vcc, %d, %s", 2 * (w - t_), v(vTok))
            a("s_nop 1")
            a("v_cndmask_b32 %s, %s, %s, vcc", v(Lg(t_, w)), v(70), v(Lg(t_, w)))
    a.label(skip)
    M = [66, 68, 70]
    for t_ in range(3):
        a("v_max3_f32 %s, %s, %s, %s", v(M[t_]), v(Lg(t_, 0)), v(Lg(t_, 1)), v(Lg(t_, 2)))
    for t_ in range(3):
        a("v_max3_f32 %s, %s, %s, %s", v(M[t_]), v(M[t_]), v(Lg(t_, 3)), v(Lg(t_, 4)))
    for t_ in range(3):
        a("v_max3_f32 %s, %s, %s, %s", v(M[t_]), v(M[t_]), v(Lg(t_, 5)), v(Lg(t_, 6)))
    for t_ in range(3):
        a("v_max_f32 %s, %s, %s", v(M[t_]), v(M[t_]), v(Lg(t_, 7)))
    for t_ in range(3):
        a("v_mul_f32 %s, %s, %s", v(M[t_]), v(QS(t_)), v(M[t_]))
    for t_ in range(3):
        for w in range(0, 8, 2):
            a("v_pk_fma_f32 %s, %s, %s, %s op_sel_hi:[1,0,0] neg_lo:[0,0,1] neg_hi:[0,0,1]",
              v(Lg(t_, w), 2), v(Lg(t_, w), 2), v(QS(t_), 2), v(M[t_], 2))
    for t_ in range(3):
        for w in range(8):
            a("v_exp_f32 %s, %s", v(Lg(t_, w)), v(Lg(t_, w)))
    SM = M
    for t_ in range(3):
        a("v_pk_add_f32 %s, %s, %s", v(SM[t_], 2), v(Lg(t_, 0), 2), v(Lg(t_, 2), 2))
    for t_ in range(3):
        a("v_pk_add_f32 %s, %s, %s", v(SM[t_], 2), v(SM[t_], 2), v(Lg(t_, 4), 2))
    for t_ in range(3):
        a("v_pk_add_f32 %s, %s, %s", v(SM[t_], 2), v(SM[t_], 2), v(Lg(t_, 6), 2))
    for t_ in range(3):
        a("v_add_f32 %s, %s, %s", v(SM[t_]), v(SM[t_]), v(SM[t_] + 1))
    for t_ in range(3):
        a("v_rcp_f32 %s, %s", v(SM[t_]), v(SM[t_]))
    a("s_nop 0")
    for t_ in range(3):
        for w in range(0, 8, 2):
            a("v_pk_mul_f32 %s, %s, %s op_sel_hi:[1,0]", v(Lg(t_, w), 2), v(Lg(t_, w), 2), v(SM[t_], 2))

    def O(t_):
        return blk(t_, 1)

    started = set()

    def pv(sr, vr):
        for t_ in range(3):
            w = t_ - sr
            if not (0 <= w <= 7):
                continue
            p_ = Lg(t_, w)
            pp, sel = p_ & ~1, p_ & 1
            for i in range(0, 20, 2):
                if t_ not in started:
                    a("v_pk_mul_f32 %s, %s, %s op_sel:[0,%d] op_sel_hi:[1,%d]", v(O(t_) + i, 2), v(vr + i, 2), v(pp, 2), sel, sel)
                else:
                    a("v_pk_fma_f32 %s, %s, %s, %s op_sel:[0,%d,0] op_sel_hi:[1,%d,1]",
                      v(O(t_) + i, 2), v(vr + i, 2), v(pp, 2), v(O(t_) + i, 2), sel, sel)
            started.add(t_)

    vSW, vSW2, vSR = 66, 67, 68
    vGA = [69, 70, 71, 72]

    def stage(t_):
        o_, pk = O(t_), blk(t_, 0)
        for i, d in enumerate((0, 2, 8, 10, 4, 6, 12, 14, 16, 18)):
            a("v_cvt_pk_bf16_f32 %s, %s, %s", v(pk + i), v(o_ + d), v(o_ + d + 1))
        a("ds_write_b128 %s, %s offset:%d", v(vSW), v(pk, 4), 32 * t_)
        a("ds_write_b128 %s, %s offset:%d", v(vSW), v(pk + 4, 4), 768 + 32 * t_)
        a("ds_write_b64 %s, %s offset:%d", v(vSW2), v(pk + 8, 2), 32 * t_)

    stamp(a, 7, None, 1)
    for sr in (2, 1, 0):
        pv(sr, blk(sr, 2))
    rdV(-4, blk(0, 2)); rdV(-5, blk(1, 2)); rdV(-6, blk(2, 2))
    a("s_mul_i32 %s, %s, %d", s(sT1), s(sW), 7680 - 768)
    a("v_lshrrev_b32 %s, 4, v1", v(vT))
    a("v_mul_u32_u24 %s, 1536, %s", v(vSW), v(vT))
    a("v_lshl_add_u32 %s, %s, 4, %s", v(vSR), v(vTok), s(sT1))
    a("v_add_u32 %s, %s, %s", v(vSW), v(vSW), v(vSR))
    a("v_and_b32 %s, 1, %s", v(vSW2), v(vT))
    a("v_mul_u32_u24 %s, 768, %s", v(vSW2), v(vSW2))
    a("v_lshrrev_b32 %s, 1, %s", v(vT), v(vT))
    a("v_lshl_add_u32 %s, %s, 3, %s", v(vSW2), v(vT), v(vSW2))
    a("v_add_u32 %s, %s, %s", v(vSW2), v(vSW2), v(vSR))
    a("v_add_u32 %s, %d, %s", v(vSW2), 8 * 768, v(vSW2))
    a("s_mul_i32 %s, %s, 7680", s(sT1), s(sW))
    a("v_lshl_add_u32 %s, v1, 4, %s", v(vSR), s(sT1))
    a("s_mov_b32 %s, %d", s(sT2), NKG * 1024)
    a("s_mul_i32 %s, %s, %d", s(sKA), s(sRB), U)
    a("s_add_u32 %s, %s, %d", s(sKB), s(sKA), U)
    a("s_min_u32 %s, %s, 2048", s(sKB), s(sKB))
    a("s_sub_u32 %s, %s, %s", s(sKB), s(sKB), s(sKA))
    a("s_add_u32 %s, %s, %s", s(sT1), s(sROW0), s(sT0))
    a("v_mov_b32 %s, 0x%x", v(75), OOB)
    for i in range(3):
        thr = 48 * (i + 1) - 64 * i
        a("v_cmp_le_u32 vcc, %d, v1", thr)
        a("v_add_u32 %s, %d, v1", v(73), 16 * i)
        a("v_mov_b32 %s, %d", v(74), 512 * i)
        a("v_cndmask_b32 %s, 0, 48, vcc", v(vT))
        a("v_sub_u32 %s, %s, %s", v(73), v(73), v(vT))
        a("v_add_u32 %s, %s, %s", v(73), s(sT1), v(73))
        a("v_cndmask_b32 %s, 0, 1, vcc", v(vT))
        a("v_lshl_add_u32 %s, %s, 9, %s", v(74), v(vT), v(74))
        a("v_lshrrev_b32 %s, 5, %s", v(vT), v(73))
        a("v_mul_lo_u32 %s, %s, %s", v(vT), v(vT), s(sT2))
        a("v_add_u32 %s, %s, %s", v(74), v(74), v(vT))
        a("v_and_b32 %s, 31, %s", v(vT), v(73))
        a("v_lshl_add_u32 %s, %s, 4, %s", v(74), v(vT), v(74))
        a("v_subrev_u32 %s, %s, %s", v(73), s(sKA), v(73))
        a("v_cmp_gt_u32 vcc, %s, %s", s(sKB), v(73))
        a("s_nop 1")
        a("v_cndmask_b32 %s, %s, %s, vcc", v(vGA[i]), v(75), v(74))
    a("v_cmp_gt_u32 vcc, 32, v1")
    a("s_mul_i32 %s, %s, 5", s(sT1), s(sCB))
    a("s_add_u32 %s, %s, %d", s(sT1), s(sT1), 108 + ACT_OFF // 1024)
    a("v_cndmask_b32 %s, %s, %s, vcc", v(vGA[3]), v(75), v(vGA[1]))
    a("s_lshl_b32 %s, %s, 10", s(sT1), s(sT1))
    a("s_add_u32 %s, %s, 4096", s(sT2), s(sT1))
    a("s_waitcnt lgkmcnt(15)")
    pv(-1, VH[0])
    rdV(-7, VH[0])
    pv(-2, VH[1]); pv(-3, VH[2])
    a("s_waitcnt lgkmcnt(5)")
    pv(-4, blk(0, 2)); pv(-5, blk(1, 2))
    a("v_mov_b32 v73, 0x%x", LCNT + 8)
    lds_wait(a, 73, 74)
    stage(2)
    pv(-6, blk(2, 2))
    stage(1)
    a("s_waitcnt lgkmcnt(6)")
    pv(-7, VH[0])
    stage(0)
    stamp(a, 8, None, 1)
    a("s_waitcnt lgkmcnt(0)")
    RB = 6
    for i in range(8):
        a("ds_read_b128 %s, %s offset:%d", v(RB + 4 * i, 4), v(vSR), 1024 * i)
    for i in range(8):
        j, ii = i // 3, i % 3
        ga = vGA[3] if i == 7 else vGA[ii]
        a("s_waitcnt lgkmcnt(%d)", 7 - i)
        a("buffer_store_dwordx4 %s, %s, %s, %s offen offset:%d sc1", v(RB + 4 * i, 4), v(ga), s(SWS, 4),
          s(sT2 if j == 2 else sT1), 2048 * (j & 1))
    lds_arrive(a, 2, 3, 3)
    stamp(a, 4)
    a("s_branch L_p3")


C0, C1, C2, C3, C4, C5, CEF, CES = 0, 1, 2, 3, 4, 5, 6, 9
GO_, GF_ = 8, 9
vC, vC2, vG, vOne, vChk = 2, 3, 14, 15, 0


def cnt_setup(a):
    a("s_lshl_b32 %s, %s, 6", s(sT0), s(sKH))
    a("s_add_u32 %s, %s, 0x%x", s(sT1), s(sT0), LCNT + 64)
    a("v_mov_b32 %s, %s", v(vC), s(sT1))
    a("s_sub_u32 %s, 0x%x, %s", s(sT1), LCNT + 128, s(sT0))
    a("v_mov_b32 %s, %s", v(vC2), s(sT1))
    a("v_mov_b32 %s, 0x%x", v(vG), LCNT)
    a("v_mov_b32 %s, 1", v(vOne))


def arrive(a, *items):
    a("s_mov_b64 exec, 1")
    for base, w in items:
        a("ds_add_u32 %s, %s offset:%d", v(base), v(vOne), 4 * w)
    a("s_mov_b64 exec, -1")


def chk_now(a, base, w, n, sleep=0):
    lp, ex = a.new("L_cl"), a.new("L_cx")
    a("s_mov_b32 s100, 0x400000")
    a.label(lp)
    if sleep:
        a("s_sleep %d", sleep)
    a("ds_read_b32 %s, %s offset:%d", v(vChk), v(base), 4 * w)
    a("s_sub_u32 s100, s100, 1")
    a("s_cbranch_scc1 %s", ex)
    a("s_waitcnt lgkmcnt(0)")
    a("v_readfirstlane_b32 %s, %s", s(sSPIN), v(vChk))
    a("s_nop 1")
    a("s_cmp_lt_u32 %s, %d", s(sSPIN), n)
    a("s_cbranch_scc1 %s", lp)
    a.label(ex)


PST = 1056
GH_, GBF, GBS, GB2, GB1, GF2 = 10, 11, 12, 13, 14, 15


def p3_body(a, three):
    vRW = [[4, 5], [8, 9]]
    vXO = [10, 11]
    vX2, vP0, vP1 = 12, 6, 7
    WF, ACCF, ACCS, BF, BS, XR, X2 = 16, 48, 80, 112, 144, 176, 224
    XN, XN2 = 12, 8
    LA, LW = OPT["la3"] if three else OPT["la"], OPT["lw"]
    NG, N1, N2, N3 = 74, 18, 36, 54
    WD = LW + 1
    assert WD * 8 <= 32 and LA < XN
    issued, lds, slow = [], [], []
    p2 = [i for i in range(NG) if (i < N3 and i % 2 == 0) or N3 <= i < N3 + 10] if three else []

    def aset(i):
        return i & 1 if i < N3 else int(i >= N3 + 10)

    def gidx(i):
        return (i % 18) & ~1 if i < N3 else (i - N3) % 10

    def soff(i, reg, rot):
        if i < N3:
            g = i % 6
            if g == 0:
                a("s_add_u32 %s, %s, %s", s(reg), s(sXB), s(rot))
                wrap_add(a, rot, 6144, 54 * 1024)
            if g == 4:
                a("s_add_u32 %s, %s, 4096", s(reg), s(reg))
            return (g & 2) * 1024
        g = (i - N3) % 10
        if g % 4 == 0:
            a("s_add_u32 %s, %s, %d", s(reg), s(sXO), g * 1024)
        return (g % 4) * 1024

    def ldx(i):
        if i == N3:
            a("v_add_u32 %s, %s, %s", v(vXO[0]), s(sKA), v(vXO[0]))
            a("v_add_u32 %s, %s, %s", v(vXO[1]), s(sKB), v(vXO[1]))
        o = soff(i, sT3, sRX)
        a("buffer_load_dwordx4 %s, %s, %s, %s offen offset:%d sc1", v(XR + (i % XN) * 4, 4), v(vXO[aset(i)]), s(SWS, 4), s(sT3), o)
        issued.append(("X", i))

    def ldx2(n):
        i = p2[n]
        if i == N3:
            a("v_add_u32 %s, %s, %s", v(vX2), s(sKA), v(vX2))
        o = soff(i, sT2, sRW)
        a("buffer_load_dwordx4 %s, %s, %s, %s offen offset:%d sc1", v(X2 + (n % XN2) * 4, 4), v(vX2), s(SWS, 4), s(sT2), o)
        issued.append(("X", i))

    def after(tag):
        return len(issued) - 1 - max(k for k, x in enumerate(issued) if x == tag)

    def lgk(tag):
        return min(15, len(lds) - 1 - max(k for k, x in enumerate(lds) if x == tag))

    def rd_items(i):
        it = []
        if i in (N1, N2):
            it.append((18, lambda: [a("v_%s_u32 %s, %d, %s", "add" if i == N1 else "subrev", v(q), D_REG, v(q)) for q in (4, 5, 8, 9)]))
        if i == N3:
            it.append((18, lambda: [a("v_add_u32 %s, %s, %s", v(q), s(sT0 if q < 6 else sT1), v(q)) for q in (4, 5, 8, 9)]))
        for k in range(2):
            for e in range(2):
                def f(k=k, e=e):
                    buf = WF + ((i % WD) * 2 + k) * 4
                    a("ds_read_b64_tr_b16 %s, %s offset:%d", v(buf + 2 * e, 2), v(vRW[aset(i)][k]), gidx(i) * 2048 + 1024 * e)
                    lds.append(("W", i))
                it.append((5, f))
        if i + 1 == N3:
            it.append((14, lambda: arr((vC, C5))))
        if i < N2 and i % 6 == 5:
            it.append((14, lambda: arr((13, PW))))
        return it

    def arr(*items):
        arrive(a, *items)
        lds.extend([("A", 0)] * len(items))

    def wr_items(acc, base, word):
        it = []
        for k in range(2):
            for q in range(4):
                def f(k=k, q=q):
                    a("ds_write_b128 %s, %s offset:%d", v(vP0), v(acc + 16 * k + 4 * q, 4), base + (4 * k + q) * PST)
                    lds.append(("EW", 0))
                it.append((OPT["wcost"], f))
        if word is not None:
            it.append((15, lambda: arr((vG, word))))
        return it

    jw, jb = N3 + 1, N3 + 11
    checks = {N1 - LW: (vC, C0, 4), N2 - LW: (vC, C2, 2), N3 - LW: (vC, C4, 2), N3 - LA: (vG, GO_, 1), jw: (vC, C5, 2),
              NG - 1: (vG, GF_, 4)}
    if three:
        checks[jb] = (vG, GF2, 4)
    CKD = OPT["ckd"]
    cred = [0.0]
    assert len(checks) == 6 + three and all(abs(x - y) > CKD for x in checks for y in checks if x != y)
    n2 = [0]
    for i in range(LA):
        ldx(i)
        while n2[0] < len(p2) and p2[n2[0]] <= i and n2[0] < XN2 - 1:
            ldx2(n2[0])
            n2[0] += 1
    for i in range(LW):
        for c_, f in rd_items(i):
            f()
    bg = []
    used2 = 0
    for j in range(NG):
        lg = lgk(("W", j))
        if j in checks:
            lg = min(lg, lgk(("CK", j)))
        a("s_waitcnt vmcnt(%d) lgkmcnt(%d)", after(("X", j)), lg)
        p3s = {0: 2, 6: 3, 12: 4, 18: 5, 30: 6, 44: 7, 60: 8}
        if j in p3s:
            stamp(a, p3s[j], None, 2)
        q = []
        if j in checks:
            def ev(j=j):
                base, w, n = checks[j]
                sl, bk = a.new("L_sl"), a.new("L_bk")
                a("v_readfirstlane_b32 %s, %s", s(sSPIN), v(vChk))
                a("s_nop 0")
                a("s_cmp_lt_u32 %s, %d", s(sSPIN), n)
                a("s_cbranch_scc1 %s", sl)
                a.label(bk)
                slow.append((sl, bk, base, w, n))
            q.append((18, ev))
        lq = []
        if j + LA < NG:
            lq.append((OPT["lcost"], lambda j=j: ldx(j + LA)))
        while n2[0] < len(p2) and p2[n2[0]] <= j + LA and n2[0] < used2 + XN2 - 1:
            lq.append((OPT["lcost"], lambda n=n2[0]: ldx2(n)))
            n2[0] += 1
        rq = rd_items(j + LW) if j + LW < NG else []
        if j + CKD in checks:
            def ck(j=j):
                base, w, n = checks[j + CKD]
                a("ds_read_b32 %s, %s offset:%d", v(vChk), v(base), 4 * w)
                lds.append(("CK", j + CKD))
            rq.append((5, ck))
        while lq or rq:
            if lq:
                q.append(lq.pop(0))
            q += rq[:2]
            rq = rq[2:]
        if j == jw:
            if three:
                bg += wr_items(BF, 8 * PST, GB1)
            bg += wr_items(ACCF, 0, GBF)
        if j == jb and three:
            bg += wr_items(BS, 8 * PST, GB2)
        mf = []
        acc, bcc = (ACCF, BF) if j < N3 else (ACCS, BS)
        for k in range(2):
            mf.append((acc + 16 * k, k, XR + (j % XN) * 4))
        if j in p2:
            for k in range(2):
                mf.append((bcc + 16 * k, k, X2 + (used2 % XN2) * 4))
            used2 += 1
        for n_, (d, k, x) in enumerate(mf):
            buf = WF + ((j % WD) * 2 + k) * 4
            a("v_mfma_f32_32x32x16_bf16 %s, %s, %s, %s", v(d, 16), v(buf, 4), v(x, 4), "0" if j in (0, N3) else v(d, 16))
            last = n_ == len(mf) - 1
            bud = OPT["bud"] - (4 if last else 0)
            rem = len(mf) - n_
            share = -(-sum(c for c, f in q) // rem)
            spent = 0
            while q and (last or spent < share):
                c_, f = q.pop(0)
                f()
                spent += c_
            if bg:
                cred[0] += OPT["wrate"] if len(mf) == 4 else OPT["wrate2"]
            while bg and (cred[0] >= 1 or bg[0][0] == 15):
                c_, f = bg.pop(0)
                f()
                if c_ != 15:
                    cred[0] -= 1
    stamp(a, 8, 11)
    for c_, f in bg:
        f()
    a("s_nop 7")
    a("s_nop 1")
    for c_, f in wr_items(ACCS, 0, GBS):
        f()
    return slow


def emit_slow(a, slow):
    for sl, bk, base, w, n in slow:
        a.label(sl)
        chk_now(a, base, w, n)
        a("s_branch %s", bk)


def out_addr(a, vD, vT, sRow, sCt):
    a("v_and_b32 %s, 31, v1", v(vD))
    a("s_lshl_b32 %s, %s, 5", s(sT0), s(sRow))
    a("v_add_u32 %s, %s, %s", v(vD), s(sT0), v(vD))
    a("v_mul_u32_u24 %s, 1280, %s", v(vD), v(vD))
    a("v_lshrrev_b32 %s, 5, v1", v(vT))
    a("v_lshl_add_u32 %s, %s, 3, %s", v(vD), v(vT), v(vD))
    a("s_lshl_b32 %s, %s, 7", s(sT0), s(sCB3))
    a("s_lshl_b32 %s, %s, 6", s(sT2), s(sCt))
    a("s_add_u32 %s, %s, %s", s(sT0), s(sT0), s(sT2))
    a("v_add_u32 %s, %s, %s", v(vD), s(sT0), v(vD))


def aux_addr(a, nr):
    vFl, vFo = 8, 9
    a("s_mul_i32 %s, %s, %d", s(sT0), s(sKH), D_KH)
    a("s_mul_i32 %s, %s, 6144", s(sT1), s(sPAR))
    a("s_add_u32 %s, %s, %s", s(sT1), s(sT1), s(sT0))
    a("v_lshl_add_u32 v12, v1, 4, %s", s(sT1))
    a("s_mul_i32 %s, %s, 1024", s(sT1), s(sPAR))
    a("s_add_u32 %s, %s, %s", s(sT1), s(sT1), s(sT0))
    a("s_add_u32 %s, %s, %d", s(sT1), s(sT1), D_REG)
    a("v_lshl_add_u32 v13, v1, 4, %s", s(sT1))
    mag = (1 << 20) // U + 1
    a("s_mul_i32 %s, %s, %d", s(sT0), s(sR0), 32 * mag)
    a("s_add_u32 %s, %s, %d", s(sT1), s(sT0), (32 * nr - 1) * mag)
    a("s_lshr_b32 %s, %s, 20", s(sT0), s(sT0))
    a("s_lshr_b32 %s, %s, 20", s(sT1), s(sT1))
    a("s_sub_u32 %s, %s, %s", s(sT0), s(sT1), s(sT0))
    a("s_lshl_b32 %s, %s, 3", s(sT0), s(sT0))
    a("s_add_u32 %s, %s, 7", s(sT0), s(sT0))
    a("v_and_b32 %s, %s, v1", v(vFo), s(sT0))
    a("v_lshlrev_b32 %s, 2, %s", v(vFo), v(vFo))
    slot_off(a, sCSD, sT0)
    a("s_add_u32 %s, %s, 0x%x", s(sCSD), s(sCSD), FLG_OFF + 256)


PW = 6


def wait_prog(a, n):
    lp, ex = a.new("L_cl"), a.new("L_cx")
    a("s_mov_b32 s100, 0x400000")
    a.label(lp)
    a("s_sleep %d", OPT["ssl"])
    a("ds_read_b64 v[16:17], %s offset:%d", v(vC), 4 * PW)
    a("s_sub_u32 s100, s100, 1")
    a("s_cbranch_scc1 %s", ex)
    a("s_waitcnt lgkmcnt(0)")
    a("v_min_u32 v16, v16, v17")
    a("s_nop 0")
    a("v_readfirstlane_b32 %s, v16", s(sSPIN))
    a("s_nop 1")
    a("s_cmp_lt_u32 %s, %d", s(sSPIN), n)
    a("s_cbranch_scc1 %s", lp)
    a.label(ex)


def refill(a, n0=20, prio=0):
    if n0 < 20:
        chk_now(a, vG, GH_, 5, sleep=1)
        stage_o(a, n0, 20, OPT["o_pace"])
    if prio:
        a("s_setprio %d", prio)
    stamp(a, 1, None, 2)
    for c in range(3):
        wait_prog(a, c + 1)
        stamp(a, 2 + c, None, 2)
        for k in range(6 * c, 6 * c + 6):
            a("ds_write_b128 v12, %s offset:%d", v(STGH + 4 * k, 4), c * 12288 + (k % 6) * 1024)
    arrive(a, (vC, C2))
    stamp(a, 5, None, 2)
    a("s_waitcnt vmcnt(0)")
    a("buffer_load_dword v8, v9, %s, %s offen sc1", s(SWS, 4), s(sCSD))
    for k in (18, 19):
        a("ds_write_b128 v13, %s offset:%d", v(STGO + 4 * k, 4), k * 2048)
    for c in range(3):
        wait_prog(a, c + 4)
        if c:
            stamp(a, 5 + c, None, 2)
        for k in range(6 * c, 6 * c + 6):
            a("ds_write_b128 v13, %s offset:%d", v(STGO + 4 * k, 4), k * 2048)
        if c == 2:
            arrive(a, (vC, C4))
            stamp(a, 8, None, 2)
        if c == OPT["ogc"]:
            sk = a.new("L_npo")
            a("s_cmp_lg_u32 %s, 0", s(sLW))
            a("s_cbranch_scc1 %s", sk)
            a("s_waitcnt vmcnt(0)")
            spin(a, 8, 9, SWS, s(sCSD), 1, OPT["slp"], True)
            arrive(a, (vG, GO_))
            a.label(sk)
    if prio:
        a("s_setprio 0")


def finish_setup(a):
    srd(a, SOUT, pOUT, S * D * 2)
    a("v_lshrrev_b32 v6, 3, v1")
    a("v_and_b32 v7, 7, v1")
    a("s_lshl_b32 %s, %s, 5", s(sT0), s(sR0))
    a("s_lshl4_add_u32 %s, %s, %s", s(sT0), s(sLW), s(sT0))
    a("v_add_u32 v10, %s, v6", s(sT0))
    a("v_mul_u32_u24 v10, 1280, v10")
    a("v_lshl_add_u32 v10, v7, 4, v10")
    a("s_lshl_b32 %s, %s, 7", s(sT0), s(sCB3))
    a("v_add_u32 v10, %s, v10", s(sT0))
    a("v_add_u32 v18, %d, v10", 8 * 1280)
    a("s_mul_i32 %s, %s, %d", s(sT0), s(sLW), 8 * 1280)
    a("s_sub_u32 %s, %d, %s", s(sT0), 64 * 1280, s(sT0))
    a("s_cmp_eq_u32 %s, 1", s(sROLE))
    a("s_cselect_b32 %s, 0x%x, %s", s(sT0), OOB, s(sT0))
    a("v_add_u32 v11, %s, v10", s(sT0))
    for q, r_ in enumerate((10, 18, 11)):
        a("buffer_load_dwordx4 %s, %s, %s, 0 offen", v(32 + 4 * q, 4), v(r_), s(SX, 4))
    a("v_mul_u32_u24 v7, %d, v7", PST)
    a("v_lshl_add_u32 v7, v6, 4, v7")
    a("s_mul_i32 %s, %s, %d", s(sT0), s(sPAR), 16 * PST)
    a("s_lshl_b32 %s, %s, 8", s(sT1), s(sKH))
    a("s_add_u32 %s, %s, %s", s(sT0), s(sT0), s(sT1))
    a("v_add_u32 v4, %s, v7", s(sT0))
    a("v_add_u32 v5, %d, v4", D_KH)
    a("s_lshl_b32 %s, %s, 7", s(sT0), s(sLW))
    a("v_add_u32 v6, %s, v7", s(sT0))
    a("v_add_u32 v7, %d, v6", D_KH)


def finish(a):
    a.label("L_finish")
    P, FA, TM, XA, FB, XB = 104, 136, 152, 168, 184, 192

    def rdA():
        for ps in range(2):
            for m in range(2):
                for hf in range(2):
                    a("ds_read_b128 %s, %s offset:%d", v(P + 16 * m + 8 * ps + 4 * hf, 4), "v5" if m else "v4", 128 * ps + 512 * hf)

    def rdB(dst):
        for m in range(4):
            for hf in range(2):
                a("ds_read_b128 %s, %s offset:%d", v(dst + 8 * m + 4 * hf, 4), "v6" if m < 2 else "v7", (8 + 16 * (m & 1)) * PST + 512 * hf)

    def sumB(src, dst):
        for i in range(0, 8, 2):
            a("v_pk_add_f32 %s, %s, %s", v(src + i, 2), v(src + i, 2), v(src + 8 + i, 2))
            a("v_pk_add_f32 %s, %s, %s", v(src + 16 + i, 2), v(src + 16 + i, 2), v(src + 24 + i, 2))
        for i in range(0, 8, 2):
            a("v_pk_add_f32 %s, %s, %s", v(dst + i, 2), v(src + i, 2), v(src + 16 + i, 2))

    def silu(r, n):
        for i in range(n):
            a("v_mul_f32 %s, 0x%x, %s", v(TM + i), f2u(-LOG2E), v(r + i))
        for i in range(n):
            a("v_exp_f32 %s, %s", v(TM + i), v(TM + i))
        a("s_nop 0")
        for i in range(n):
            a("v_add_f32 %s, 1.0, %s", v(TM + i), v(TM + i))
        for i in range(n):
            a("v_rcp_f32 %s, %s", v(TM + i), v(TM + i))
        a("s_nop 0")
        for i in range(n):
            a("v_mul_f32 %s, %s, %s", v(r + i), v(r + i), v(TM + i))

    two, two0 = a.new("L_f2"), a.new("L_f0")
    a("s_waitcnt vmcnt(0)")
    for i in range(8):
        a("v_lshlrev_b32 %s, 16, %s", v(XA + 2 * i), v(32 + i))
        a("v_and_b32 %s, 0xffff0000, %s", v(XA + 2 * i + 1), v(32 + i))
    a("s_cmp_eq_u32 %s, 1", s(sROLE))
    a("s_cbranch_scc1 %s", two0)
    chk_now(a, vG, GB1, 4, sleep=OPT["ssl"])
    rdB(216)
    arrive(a, (vG, GF2))
    a("s_waitcnt lgkmcnt(0)")
    sumB(216, FB)
    silu(FB, 8)
    for i in range(4):
        a("v_lshlrev_b32 %s, 16, %s", v(XB + 2 * i), v(40 + i))
        a("v_and_b32 %s, 0xffff0000, %s", v(XB + 2 * i + 1), v(40 + i))
    a.label(two0)
    chk_now(a, vG, GBF, 4, sleep=OPT["ssl"])
    rdA()
    arrive(a, (vG, GF_))
    a("s_waitcnt lgkmcnt(0)")
    for i in range(0, 16, 2):
        a("v_pk_add_f32 %s, %s, %s", v(FA + i, 2), v(P + i, 2), v(P + 16 + i, 2))
    silu(FA, 16)
    a("s_cmp_eq_u32 %s, 1", s(sROLE))
    a("s_cbranch_scc1 %s", two)
    chk_now(a, vG, GB2, 4, sleep=1)
    rdB(216)
    a("s_waitcnt lgkmcnt(0)")
    sumB(216, 216)
    for i in range(0, 8, 2):
        a("v_pk_fma_f32 %s, %s, %s, %s", v(XB + i, 2), v(FB + i, 2), v(216 + i, 2), v(XB + i, 2))
    for i in range(4):
        a("v_cvt_pk_bf16_f32 %s, %s, %s", v(40 + i), v(XB + 2 * i), v(XB + 2 * i + 1))
    a("buffer_store_dwordx4 v[40:43], v11, %s, 0 offen %s", s(SOUT, 4), OPT["ostf"])
    a.label(two)
    chk_now(a, vG, GBS, 4)
    rdA()
    for ps in range(2):
        a("s_waitcnt lgkmcnt(%d)", 4 * (1 - ps))
        for m in range(2):
            for i in range(8 * ps, 8 * ps + 8, 2):
                a("v_pk_fma_f32 %s, %s, %s, %s", v(XA + i, 2), v(FA + i, 2), v(P + 16 * m + i, 2), v(XA + i, 2))
        for i in range(4 * ps, 4 * ps + 4):
            a("v_cvt_pk_bf16_f32 %s, %s, %s", v(32 + i), v(XA + 2 * i), v(XA + 2 * i + 1))
        a("buffer_store_dwordx4 %s, %s, %s, 0 offen %s", v(32 + 4 * ps, 4), "v18" if ps else "v10", s(SOUT, 4), OPT["ostf"])
    a("s_branch L_done")


def phase3(a):
    a.label("L_p3")
    a.c("---------------- phase 3, main waves: row tile r = w&1, K half w>>1")
    stamp(a, 5)
    a("s_and_b32 %s, %s, 1", s(sR), s(sW))
    a("s_lshr_b32 %s, %s, 1", s(sKH), s(sW))
    a("s_add_u32 %s, %s, %s", s(sRT), s(sR0), s(sR))
    hflag_addr(a, 16, 17, 2)
    push_addr(a, 18, 19, 20)
    p3_rot(a)
    a("s_mov_b32 %s, %s", s(sRW), s(sRX))
    tr_lane(a, 6, 7, 4)
    a("s_mul_i32 %s, %s, %d", s(sT0), s(sKH), D_KH)
    a("s_lshl_b32 %s, %s, 11", s(sT2), s(sR))
    a("s_add_u32 %s, %s, %s", s(sT1), s(sT0), s(sT2))
    a("v_add_u32 v4, %s, v6", s(sT1))
    a("v_xor_b32 v5, 64, v4")
    a("s_sub_u32 %s, %s, %s", s(sT1), s(sT0), s(sT2))
    a("s_add_u32 %s, %s, 2048", s(sT1), s(sT1))
    a("v_add_u32 v8, %s, v6", s(sT1))
    a("v_xor_b32 v9, 64, v8")
    a("s_mul_i32 %s, %s, %d", s(sT2), s(sR), 16 * PST)
    a("s_add_u32 %s, %s, %s", s(sT0), s(sT0), s(sT2))
    a("v_lshl_add_u32 v6, v1, 4, %s", s(sT0))
    a("s_lshl_b32 %s, %s, 10", s(sT2), s(sR))
    a("v_lshl_add_u32 v10, v1, 4, %s", s(sT2))
    a("s_sub_u32 %s, 1024, %s", s(sT1), s(sT2))
    a("v_lshl_add_u32 v11, v1, 4, %s", s(sT1))
    a("s_mul_i32 %s, %s, 9", s(sKA), s(sT2))
    a("s_mul_i32 %s, %s, 9", s(sKB), s(sT1))
    a("s_sub_u32 %s, 2, %s", s(sT1), s(sR))
    a("s_mul_i32 %s, %s, %d", s(sT1), s(sT1), NKG * 1024)
    a("v_add_u32 v12, %s, v10", s(sT1))
    a("s_mul_i32 %s, %s, %d", s(sT2), s(sRT), NKG)
    a("s_add_u32 %s, %s, %d", s(sT2), s(sT2), ACT_OFF // 1024)
    a("s_mul_i32 %s, %s, 54", s(sT0), s(sKH))
    a("s_add_u32 %s, %s, %s", s(sXB), s(sT2), s(sT0))
    a("s_lshl_b32 %s, %s, 10", s(sXB), s(sXB))
    a("s_mul_i32 %s, %s, 20", s(sT0), s(sKH))
    a("s_add_u32 %s, %s, %s", s(sXO), s(sT2), s(sT0))
    a("s_add_u32 %s, %s, 108", s(sXO), s(sXO))
    a("s_lshl_b32 %s, %s, 10", s(sXO), s(sXO))
    n2 = a.new("L_n2")
    cnt_setup(a)
    a("s_lshl_b32 %s, %s, 2", s(sT0), s(sR))
    a("v_add_u32 v13, %s, %s", s(sT0), v(vC))
    a("s_waitcnt vmcnt(0)")
    stamp(a, 6)
    a("s_mov_b64 exec, 1")
    a("ds_add_rtn_u32 v19, %s, %s", v(vG), v(vOne))
    a("s_waitcnt lgkmcnt(0)")
    a("v_readfirstlane_b32 %s, v19", s(sT2))
    a("s_nop 1")
    a("s_cmp_lt_u32 %s, 3", s(sT2))
    a("s_cbranch_scc1 %s", n2)
    a("s_mov_b64 exec, -1")
    a("buffer_store_dword %s, v18, %s, %s offen sc1", v(vOne), s(SWS, 4), s(sCSO))
    a("s_cmp_eq_u32 %s, 1", s(sROLE))
    a("s_cbranch_scc1 %s", n2)
    a("s_mov_b32 %s, 0x%x", s(sT0), FLG_OFF)
    spin(a, 16, 17, SWS, s(sT0), 1, OPT["slp"])
    arrive(a, (vG, GH_))
    a.label(n2)
    a("s_mov_b64 exec, -1")
    a("s_cmp_ge_u32 %s, 10", s(sCB3))
    a("s_cbranch_scc1 L_done")
    a("s_lshl1_add_u32 %s, %s, %d", s(sT0), s(sKA), D_REG)
    a("s_lshl1_add_u32 %s, %s, %d", s(sT1), s(sKB), D_REG)
    chk_now(a, vG, GH_, 5, sleep=1)
    stamp(a, 7, 10)
    stamp(a, 1, None, 2)
    a("s_cmp_eq_u32 %s, 1", s(sROLE))
    a("s_cbranch_scc1 L_p3_two")
    slow = p3_body(a, True)
    a.label("L_done")
    stamp(a, 9)
    stamp_flush(a, 6)
    a("s_endpgm")
    emit_slow(a, slow)
    a.label("L_p3_two")
    slow = p3_body(a, False)
    a("s_branch L_done")
    emit_slow(a, slow)
    a.label("L_aux")
    stamp(a, 5)
    aux_addr(a, 3)
    finish_setup(a)
    a("s_waitcnt vmcnt(3)")
    stamp(a, 6)
    touch(a, 3, 24, 25, 26)
    refill(a, OPT["o_pre"], OPT["sprio"])
    stamp(a, 8)
    finish(a)


def spare(a):
    a.c("---------------- spare workgroup: row stats, (master: go broadcast), then phase 3")
    l1, l2, l3 = a.new("L_sp"), a.new("L_sp"), a.new("L_sp")
    a("s_waitcnt lgkmcnt(0)")
    srd(a, SX, pX, S * D * 2)
    srd(a, SDBG, pDBG, 256)
    srd(a, SWS, pWS, WS_BYTES)
    a("s_cmp_lt_u32 %s, 4", s(sW))
    a("s_cbranch_scc1 %s", l1)
    rowstats_issue(a)
    a("s_waitcnt vmcnt(1)")
    rowstats_finish(a)
    a("v_mov_b32 %s, 0", v(LvO))
    a("v_lshlrev_b32 %s, 2, v1", v(LvT))
    a("v_add_u32 %s, 0x%x, %s", v(LvT), LCNT, v(LvT))
    a("ds_write_b32 %s, %s", v(LvT), v(LvO))
    a("s_waitcnt vmcnt(0) lgkmcnt(0)")
    a("s_barrier")
    a("s_cmp_lg_u32 %s, 4", s(sW))
    a("s_cbranch_scc1 %s", l3)
    spin(a, LvF, LvO, SWS, s(sGO), 1, 16)
    a.label(l3)
    a("s_barrier")
    a("s_branch L_spare_lnext")
    a.label(l1)
    a("s_barrier")
    if OPT["sppf"]:
        w0 = a.new("L_spw0")
        a("s_cmp_eq_u32 %s, 0", s(sW))
        a("s_cbranch_scc1 %s", w0)
        a("s_cmp_eq_u32 %s, 14", s(sCB))
        a("s_cselect_b32 %s, %s, 5", s(sT0), s(sRB))
        a("s_mul_i32 %s, %s, 3", s(sT0), s(sT0))
        a("s_add_u32 %s, %s, %s", s(sT0), s(sT0), s(sW))
        a("s_sub_u32 %s, %s, 1", s(sT0), s(sT0))
        a("s_lshl_b32 %s, %s, 13", s(sT0), s(sT0))
        a("v_lshl_add_u32 v9, v1, 7, %s", s(sT0))
        srd(a, SW3, pWD, F * D * 2)
        srd(a, SWO, pWO, D * D * 2)
        for i in range(21):
            a("s_mov_b32 %s, %d", s(sT0), (i if i < 15 else i - 15) * 18 * 8192)
            a("buffer_load_dword v0, v9, %s, %s offen", s(SW3 if i < 15 else SWO, 4), s(sT0))
        a("s_branch %s", l2)
        a.label(w0)
    a("s_cmp_lg_u32 %s, 0", s(sW))
    a("s_cbranch_scc1 %s", l2)
    signal(a, 12)
    a("s_cmp_lg_u32 s2, %d", MASTER)
    a("s_cbranch_scc1 %s", l2)
    a("v_lshlrev_b32 v9, 2, v1")
    a("v_or_b32 v9, 0x80, v9")
    spin(a, 8, 9, SDBG, "0", 8, 6)
    a("v_mul_u32_u24 v9, %d, v1", FSTR)
    a("v_mov_b32 v8, 1")
    for i in range(4):
        a("s_mov_b32 %s, 0x%x", s(sT0), FLG_OFF + 128 + 64 * i * FSTR)
        a("buffer_store_dword v8, v9, %s, %s offen sc1", s(SWS, 4), s(sT0))
    a.label(l2)
    a("s_barrier")
    a("s_branch L_p3")


def kernel(a):
    a.l.append(".p2align 8")
    a.label("KERNEL")
    a("s_cmp_ge_u32 s2, 256")
    a("s_cbranch_scc1 L_exit")
    stamp(a, 0)
    a("s_load_dwordx16 s[4:19], s[0:1], 0")
    a("s_load_dwordx4 s[20:23], s[0:1], 64")
    a("v_lshrrev_b32 v1, 6, v0")
    a("s_and_b32 %s, s2, 7", s(sT0))
    a("v_readfirstlane_b32 %s, v1", s(sW))
    a("v_and_b32 v1, 63, v0")
    a("s_lshr_b32 %s, s2, 3", s(sT1))
    if OPT["pfcode"]:
        a("s_cmp_lg_u32 %s, 3", s(sW))
        a("s_cbranch_scc1 L_nopf")
        a("s_getpc_b64 %s", s(sT2, 2))
        a.label("L_pc")
        a("s_sub_u32 %s, %s, L_pc-KERNEL", s(sT2), s(sT2))
        a("s_subb_u32 %s, %s, 0", s(sT3), s(sT3))
        a("s_and_b32 %s, %s, 7", s(sKA), s(sT1))
        a("s_lshl_b32 %s, %s, 13", s(sKA), s(sKA))
        a("v_lshl_add_u32 v2, v1, 7, %s", s(sKA))
        a("v_min_u32 v2, L_text_end-KERNEL-4, v2")
        a("v_mov_b32 v3, %s", s(sT3))
        a("v_add_co_u32 v2, vcc, %s, v2", s(sT2))
        a("s_nop 1")
        a("v_addc_co_u32 v3, vcc, 0, v3, vcc")
        a("global_load_dword v0, v[2:3], off")
        a.label("L_nopf")
    a("s_sub_u32 %s, %s, 4", s(sLW), s(sW))
    a("s_cmp_lt_u32 %s, 12", s(sT1))
    a("s_cbranch_scc0 L_dec_ffn")
    a("s_mov_b32 %s, %s", s(sCB), s(sT0))
    a("s_mov_b32 %s, %s", s(sRB), s(sT1))
    a("s_mul_i32 %s, %s, %d", s(sROW0), s(sRB), U)
    a("s_max_u32 %s, %s, %d", s(sROW0), s(sROW0), 192 - U)
    a("s_sub_u32 %s, %s, %d", s(sROW0), s(sROW0), 192 - U)
    a("s_mov_b32 %s, 1", s(sROLE))
    if OPT["part"] == 1:
        a("s_mov_b32 %s, %s", s(sCB3), s(sT1))
        a("s_lshl3_add_u32 %s, %s, 6", s(sR0), s(sT0))
    else:
        a("s_cmp_ge_u32 %s, 5", s(sT1))
        a("s_cselect_b32 %s, 5, 0", s(sT2))
        a("s_cselect_b32 %s, 14, 12", s(sR0))
        a("s_sub_u32 %s, %s, %s", s(sCB3), s(sT1), s(sT2))
        a("s_lshr_b32 %s, %s, 1", s(sT2), s(sT0))
        a("s_lshl4_add_u32 %s, %s, %s", s(sR0), s(sT2), s(sR0))
        a("s_and_b32 %s, %s, 1", s(sT2), s(sT0))
        a("s_mul_i32 %s, %s, 5", s(sT2), s(sT2))
        a("s_add_u32 %s, %s, %s", s(sCB3), s(sCB3), s(sT2))
        a("s_cmp_ge_u32 %s, 10", s(sT1))
        a("s_cselect_b32 %s, 10, %s", s(sCB3), s(sCB3))
    a("s_cmp_lt_u32 %s, 4", s(sW))
    a("s_cbranch_scc1 L_qkv_compute")
    a("s_branch L_qkv_lsetup")
    a.label("L_dec_ffn")
    a("s_sub_u32 %s, %s, 12", s(sT1), s(sT1))
    if OPT["part"] == 1:
        a("s_cmp_ge_u32 %s, 10", s(sT1))
        a("s_cselect_b32 %s, 10, 0", s(sT2))
        a("s_cselect_b32 %s, 3, 0", s(sR0))
        a("s_sub_u32 %s, %s, %s", s(sCB3), s(sT1), s(sT2))
        a("s_lshl3_add_u32 %s, %s, %s", s(sR0), s(sT0), s(sR0))
    else:
        a("s_mul_i32 %s, %s, 52", s(sT2), s(sT1))
        a("s_lshr_b32 %s, %s, 8", s(sT2), s(sT2))
        a("s_mul_i32 %s, %s, 3", s(sR0), s(sT2))
        a("s_mul_i32 %s, %s, 5", s(sT2), s(sT2))
        a("s_sub_u32 %s, %s, %s", s(sCB3), s(sT1), s(sT2))
        a("s_lshr_b32 %s, %s, 1", s(sT2), s(sT0))
        a("s_lshl4_add_u32 %s, %s, %s", s(sR0), s(sT2), s(sR0))
        a("s_and_b32 %s, %s, 1", s(sT2), s(sT0))
        a("s_mul_i32 %s, %s, 5", s(sT2), s(sT2))
        a("s_add_u32 %s, %s, %s", s(sCB3), s(sCB3), s(sT2))
    a("s_lshl3_add_u32 %s, %s, %s", s(sT2), s(sT1), s(sT0))
    a("s_sub_u32 %s, %s, 1", s(sT2), s(sT2))
    a("s_mul_i32 %s, %s, 18", s(sT0), s(sT0))
    a("s_add_u32 %s, %s, %s", s(sT0), s(sT0), s(sT1))
    a("s_cmp_eq_u32 %s, 143", s(sT0))
    a("s_cselect_b32 %s, 200, %s", s(sT0), s(sT0))
    a("s_cmp_lt_u32 %s, 18", s(sT1))
    a("s_cselect_b32 %s, %s, %s", s(sT0), s(sT0), s(sT2))
    a("s_mul_i32 %s, %s, 5958", s(sCB), s(sT0))
    a("s_lshr_b32 %s, %s, 16", s(sCB), s(sCB))
    a("s_mul_i32 %s, %s, 11", s(sRB), s(sCB))
    a("s_sub_u32 %s, %s, %s", s(sRB), s(sT0), s(sRB))
    a("s_mul_i32 %s, %s, 192", s(sROW0), s(sRB))
    a("s_mov_b32 %s, 0", s(sROLE))
    a("s_cmp_ge_u32 %s, 154", s(sT0))
    a("s_cbranch_scc1 L_spare")
    a("s_cmp_lt_u32 %s, 4", s(sW))
    a("s_cbranch_scc1 L_ffn_compute")
    ffn_loader_setup(a)
    a.label("L_qkv_lsetup")
    qkv_loader_setup(a)
    loader(a)
    sig = (OPT["cs_h"] + 7 + 1) // 2
    if OPT["stg"]:
        sig = (max(OPT["stg"]) + 5 + 1) // 2
    a.label("L_ffn_compute")
    a("s_cmp_eq_u32 %s, 3", s(sW))
    a("s_cselect_b32 %s, %d, 9", s(sSIG), sig)
    ffn_compute(a)
    phase3(a)
    a.label("L_qkv_compute")
    a("s_cmp_eq_u32 %s, 3", s(sW))
    a("s_cselect_b32 %s, %d, 9", s(sSIG), sig)
    qkv_compute(a)
    a.label("L_spare")
    spare(a)
    a.label("L_exit")
    a("s_endpgm")
    a.label("L_text_end")


HEADER = """; Fused LayerNorm + local dilated attention + SwiGLU FFN, one launch (generated by dev/gen9.py)
; @launch grid=(256,1,1) block=(512,1,1) lds=163840
.amdgcn_target "amdgcn-amd-amdhsa--gfx950"
.text
"""

KD = """.amdhsa_kernel %s
  .amdhsa_next_free_vgpr 256
  .amdhsa_next_free_sgpr 102
  .amdhsa_accum_offset 256
  .amdhsa_group_segment_fixed_size 0
  .amdhsa_kernarg_size 80
  .amdhsa_user_sgpr_count 2
  .amdhsa_user_sgpr_kernarg_segment_ptr 1
  .amdhsa_system_sgpr_workgroup_id_x 1
  .amdhsa_float_denorm_mode_32 3
.end_amdhsa_kernel
"""


def build():
    a = Asm()
    a.l.append(".globl KERNEL")
    a.l.append(".type KERNEL,@function")
    kernel(a)
    out = HEADER + a.text()
    out += '.section .rodata,"a"\n.p2align 6\n' + KD % "KERNEL"
    return out.replace("KERNEL", NAME + "_kernel")


if __name__ == "__main__":
    outp = "cdna_kernels/%s.s" % NAME
    for arg in sys.argv[1:]:
        if arg.startswith("-o"):
            outp = arg[2:]
        elif "=" in arg:
            k, val = arg.split("=")
            OPT[k] = eval(val)
    open(outp, "w").write(build())
    print("wrote", outp)
```
